```python
import torch

def _softmax(x, axis=-1):
    return torch.softmax(x, dim=axis)
def _gelu(x):
    return torch.nn.functional.gelu(x, approximate="tanh")
def _silu(x):
    return torch.nn.functional.silu(x)
def _sigmoid(x):
    return torch.sigmoid(x)
def _layernorm(x, axis=-1, eps=1e-5):
    m = x.mean(dim=axis, keepdim=True)
    v = x.var(dim=axis, keepdim=True, unbiased=False)
    return (x - m) / torch.sqrt(v + eps)
def _scatter_add(tgt, idx, src, axis=0):
    return tgt.clone().index_add_(axis, idx, src)
def _segment_sum(src, seg, n):
    out = torch.zeros((n,) + src.shape[1:], dtype=src.dtype)
    return out.index_add_(0, seg, src)
def _pad(x, pw):
    flat = tuple(v for pair in reversed(pw) for v in pair)
    return torch.nn.functional.pad(x, flat)

kernel_name = 'gated_mix__linear_kernel_hedgehog__dense_activation_mish__prompt'

def setup_inputs():

    _w = (lambda a: (lambda t: t.to(torch.bfloat16) if t.is_floating_point() else t)(torch.as_tensor(a)))
    def _A_setup():
        B, S, D, H = 1, 2048, 512, 32
        Dh = D // H
        return {
            "x": _w((lambda *s: torch.randn(*s, dtype=torch.bfloat16) * 0.05)(B, S, D)),
            "wqkv": _w((lambda *s: torch.randn(*s, dtype=torch.bfloat16) * 0.8)(D, 3 * D)),
            "w_phi": _w((lambda *s: torch.randn(*s, dtype=torch.bfloat16) * 0.8)(H, Dh, Dh) * (Dh ** -0.5)),
            "wo": _w((lambda *s: torch.randn(*s, dtype=torch.bfloat16) * 0.05)(D, D)),
        }
    _A_in = _A_setup()

    def _B_setup():
        B, S, D, F = 1, 2048, 512, 1792
        return {
            "x": _w((lambda *s: torch.randn(*s, dtype=torch.bfloat16) * 0.05)(B, S, D)),
            "w1": _w((lambda *s: torch.randn(*s, dtype=torch.bfloat16) * 6.4)(D, F) * (D ** -0.5)),
            "b1": _w((lambda *s: torch.randn(*s, dtype=torch.bfloat16) * 0.1)(F)),
            "w2": _w((lambda *s: torch.randn(*s, dtype=torch.bfloat16) * 0.1)(F, D) * (F ** -0.5)),
        }
    _B_in = _B_setup()

    return {
        "A_x": _A_in["x"],
        "A_wqkv": _A_in["wqkv"],
        "A_w_phi": _A_in["w_phi"],
        "A_wo": _A_in["wo"],
        "B_x": _B_in["x"],
        "B_w1": _B_in["w1"],
        "B_b1": _B_in["b1"],
        "B_w2": _B_in["w2"],
        "gate_w": _w((lambda *s: torch.randn(*s, dtype=torch.bfloat16) * 0.05)(512) * 16.0),
    }

def reference(A_x, A_wqkv, A_w_phi, A_wo, B_x, B_w1, B_b1, B_w2, gate_w):
    def _A_ref(x, wqkv, w_phi, wo):
        B, S, D = x.shape
        H = 32; Dh = D // H
        qkv = (lambda x, *d: x.permute(*d))((x @ wqkv).reshape(B, S, 3, H, Dh), 2, 0, 3, 1, 4)
        q, k, v = qkv[0], qkv[1], qkv[2]
        pq = torch.einsum("bhsd,hdf->bhsf", q, w_phi)
        pk = torch.einsum("bhsd,hdf->bhsf", k, w_phi)
        phi_q = torch.concatenate([_softmax(pq, axis=-1), _softmax(-pq, axis=-1)], axis=-1)
        phi_k = torch.concatenate([_softmax(pk, axis=-1), _softmax(-pk, axis=-1)], axis=-1)
        kv = torch.einsum("bhsf,bhsd->bhfd", phi_k, v)
        z  = torch.einsum("bhsf->bhf", phi_k)
        num = torch.einsum("bhqf,bhfd->bhqd", phi_q, kv)
        den = torch.einsum("bhqf,bhf->bhq", phi_q, z)[..., None] + 1e-6
        o = num / den
        return (lambda x, *d: x.permute(*d))(o, 0, 2, 1, 3).reshape(B, S, D) @ wo

    def _B_ref(x, w1, b1, w2):
        h = torch.einsum("bsd,df->bsf", x, w1) + b1
        sp = torch.log1p(torch.exp(-torch.abs(h))) + torch.where(h > 0, h, torch.zeros_like(h))
        act = h * torch.tanh(sp)
        return torch.einsum("bsf,fd->bsd", act, w2)

    x = A_x
    g = _sigmoid((x * gate_w).sum(-1, keepdims=True))
    a = _A_ref(x, A_wqkv, A_w_phi, A_wo)
    b = _B_ref(x, B_w1, B_b1, B_w2)
    return g * a + (1 - g) * b
```

```python
import re

class Ins:
    __slots__ = ("text", "tag", "kind", "w", "r", "sw", "sr", "glue", "passes", "cexact")
    def __init__(self, text, tag=None, glue=False):
        self.text = text; self.tag = tag; self.glue = glue
        classify(self)
    def __repr__(self): return self.text

class Wait:
    __slots__ = ("vm", "lg", "glue")
    def __init__(self, vm=None, lg=None, glue=False):
        self.vm = vm; self.lg = lg; self.glue = glue

class Slot:
    glue = False

TRANS = ("v_exp_f32", "v_log_f32", "v_rcp_f32", "v_rsq_f32", "v_sqrt_f32", "v_sin_f32", "v_cos_f32")
_reg = re.compile(r"^(-?)(abs\()?([vsa])(\d+|\[(\d+):(\d+)\])\)?$")

def regs_of(op):
    op = op.strip()
    m = _reg.match(op)
    if m:
        k = m.group(3)
        if m.group(5) is not None: lo, hi = int(m.group(5)), int(m.group(6))
        else: lo = hi = int(m.group(4))
        return k, set(range(lo, hi + 1))
    if op == "vcc": return "s", {"vcc"}
    if op == "exec": return "s", {"exec"}
    if op == "m0": return "s", {"m0"}
    return None, set()

def classify(i):
    t = i.text.split(";")[0].strip()
    i.w = set(); i.r = set(); i.sw = set(); i.sr = set(); i.passes = 0; i.cexact = None
    if t.endswith(":") or t.startswith("."):
        i.kind = "label"; return
    parts = t.split(None, 1)
    op = parts[0]
    ops = []
    if len(parts) > 1:
        ops = [o.strip() for o in parts[1].split(",")]
        last = ops[-1].split()
        mods = last[1:] if len(last) > 1 else []
        ops[-1] = last[0]
    else: mods = []
    def rd(o):
        k, s = regs_of(o)
        if k == "v": i.r |= s
        elif k == "s": i.sr |= s
    def wr(o):
        k, s = regs_of(o)
        if k == "v": i.w |= s
        elif k == "s": i.sw |= s
    if op.startswith("v_mfma"):
        i.kind = "mfma"; wr(ops[0]); rd(ops[1]); rd(ops[2]); rd(ops[3])
        i.passes = 8 if "32x32x16" in op else 4
        i.cexact = (regs_of(ops[1])[1] | regs_of(ops[2])[1], regs_of(ops[3])[1])
    elif op.startswith("v_"):
        i.kind = "trans" if op.replace("_e32", "").replace("_e64","") in TRANS else "valu"
        if op.startswith("v_cmp"):
            wr(ops[0]); [rd(o) for o in ops[1:]]
        elif op.startswith("v_readfirstlane") or op.startswith("v_readlane"):
            i.kind = "rdlane"; wr(ops[0]); [rd(o) for o in ops[1:]]
        elif op.startswith("v_permlane"):
            i.kind = "permlane"; wr(ops[0]); wr(ops[1]); rd(ops[0]); rd(ops[1])
        else:
            wr(ops[0]); [rd(o) for o in ops[1:]]
            if op.startswith("v_fmac") or op.startswith("v_dot2c") or op.startswith("v_writelane"): rd(ops[0])
    elif op.startswith("buffer_") or op.startswith("global_"):
        is_lds = "lds" in mods or "_lds_" in op
        if "store" in op or "atomic" in op:
            i.kind = "vstore"; [rd(o) for o in ops]
            if "x4" in op or "x3" in op: i.cexact = regs_of(ops[0] if op.startswith("buffer_") else ops[1])[1]
        elif is_lds:
            i.kind = "dma"; [rd(o) for o in ops]; i.sr.add("m0")
        elif op in ("buffer_wbl2", "buffer_inv"):
            i.kind = "vstore"
        else:
            i.kind = "vload"; wr(ops[0]); [rd(o) for o in ops[1:]]
    elif op.startswith("ds_"):
        if "read" in op:
            i.kind = "dsr"; wr(ops[0]); [rd(o) for o in ops[1:]]
        else:
            i.kind = "dsw"; [rd(o) for o in ops]
    elif op == "s_nop": i.kind = "nop"
    elif op == "s_waitcnt": i.kind = "waitcnt"
    elif op == "s_barrier": i.kind = "barrier"
    elif op.startswith("s_cbranch") or op == "s_branch" or op == "s_endpgm": i.kind = "branch"
    elif op.startswith("s_load") or op.startswith("s_memrealtime") or op.startswith("s_memtime"):
        i.kind = "smem"; wr(ops[0]); [rd(o) for o in ops[1:]]
    elif op.startswith("s_"):
        i.kind = "salu"
        if op.startswith("s_cmp") or op.startswith("s_setprio") or op.startswith("s_sleep") or op.startswith("s_bitcmp"):
            [rd(o) for o in ops]
        else:
            if ops: wr(ops[0]); [rd(o) for o in ops[1:]]
    else:
        raise ValueError("unknown instruction " + t)

VALU_KINDS = ("valu", "trans", "rdlane", "permlane")

def states(i):
    if i.kind == "label": return 0
    if i.kind == "nop": return int(i.text.split()[1]) + 1
    return 1

def need_gap(p, c):
    n = 0
    if p.kind in VALU_KINDS:
        if c.kind == "mfma" and (p.w & c.r): n = max(n, 2)
        if p.kind == "trans" and c.kind in VALU_KINDS and (p.w & c.r): n = max(n, 1)
        if c.kind == "rdlane" and (p.w & c.r): n = max(n, 1)
        if c.kind == "permlane" and (p.w & c.r): n = max(n, 2)
        if p.sw:
            if c.kind in VALU_KINDS and (p.sw & c.sr): n = max(n, 4 if c.kind == "rdlane" else 2)
            if c.kind in ("vload", "vstore", "dma") and (p.sw & c.sr): n = max(n, 5)
    if p.kind == "mfma":
        big = 12 if p.passes == 8 else 8
        if c.kind in VALU_KINDS and (p.w & (c.r | c.w)): n = max(n, big)
        if c.kind in ("vload", "vstore", "dma", "dsr", "dsw") and (p.w & (c.r | c.w)): n = max(n, big)
        if c.kind == "mfma":
            ab, cc = c.cexact
            if p.w & ab: n = max(n, big)
            if (p.w & cc) and not (p.w == cc and p.passes == c.passes): n = max(n, big - 2)
        if c.kind in VALU_KINDS and (p.cexact[1] & c.w): n = max(n, 7 if p.passes == 8 else 3)
    if p.kind == "salu" and "m0" in p.sw and c.kind == "dma": n = max(n, 1)
    if p.kind == "vstore" and p.cexact and c.w & p.cexact:
        n = max(n, 2)
    return n

def pad_hazards(seq, history=None, report=None):
    out = []
    hist = list(history or [])[-24:]
    for c in seq:
        if isinstance(c, Ins) and c.kind not in ("label",):
            need = 0; dist = 0
            for p in reversed(hist):
                g = need_gap(p, c)
                if g - dist > need: need = g - dist
                dist += states(p)
                if dist >= 20: break
            if need > 0:
                nop = Ins("s_nop %d" % (need - 1))
                out.append(nop); hist.append(nop)
                if report is not None: report.append((need, c.text))
        out.append(c); hist.append(c)
        if len(hist) > 48: hist = hist[-24:]
    return out

def resolve_waits(seq, vm=None, lg=None):
    vm = list(vm or []); lg = list(lg or [])
    out = []
    for c in seq:
        if isinstance(c, Slot): continue
        if isinstance(c, Wait):
            parts = []
            if c.vm is not None:
                n = count_after(vm, c.vm, "vm")
                if n is not None:
                    n = min(n, 63); parts.append("vmcnt(%d)" % n); vm = vm[len(vm) - n:] if n else []
            if c.lg is not None:
                n = count_after(lg, c.lg, "lg")
                if n is not None:
                    if any(t == "SMEM" for t in lg): n = 0
                    n = min(n, 15); parts.append("lgkmcnt(%d)" % n); lg = lg[len(lg) - n:] if n else []
            if parts: out.append(Ins("s_waitcnt " + " ".join(parts)))
            continue
        if c.tag == "RAW": pass
        elif c.kind in ("vload", "vstore", "dma"): vm.append(c.tag)
        elif c.kind in ("dsr", "dsw"): lg.append(c.tag)
        elif c.kind == "smem": lg.append("SMEM")
        out.append(c)
    return out, vm, lg

def count_after(outstanding, want, what):
    if want == 0:
        return 0 if True else None
    tags = want if isinstance(want, (list, tuple, set)) else [want]
    idx = -1
    for k, t in enumerate(outstanding):
        if t in tags: idx = k
    if idx < 0: return None
    return len(outstanding) - 1 - idx

def groups(filler):
    gs = []; cur = []
    for it in filler:
        cur.append(it)
        if not it.glue:
            gs.append(cur); cur = []
    if cur: gs.append(cur)
    return gs

def cost(it):
    if isinstance(it, Ins):
        if it.kind == "trans": return 2.0
        if it.kind in ("label", "nop"): return 0.0
        if it.kind == "salu": return 0.5
        if it.kind == "mfma": return 2.0
        return 1.0
    return 0.0

def weave(main, filler, first=0, last=None):
    nslots = sum(isinstance(x, Slot) for x in main)
    if last is None or last >= nslots: last = nslots - 1
    gs = groups(filler)
    tot = sum(cost(x) for x in filler) or 1.0
    span = last - first + 1
    out = []; k = 0; gi = 0; acc = 0.0
    for x in main:
        out.append(x)
        if isinstance(x, Slot):
            if first <= k <= last:
                target = tot * (k - first + 1) / span
                while gi < len(gs) and (acc < target - 1e-9 or k == last):
                    out.extend(gs[gi]); acc += sum(cost(y) for y in gs[gi]); gi += 1
            k += 1
    assert gi == len(gs)
    return out

def v(n, cnt=1):
    return "v%d" % n if cnt == 1 else "v[%d:%d]" % (n, n + cnt - 1)
def s(n, cnt=1):
    return "s%d" % n if cnt == 1 else "s[%d:%d]" % (n, n + cnt - 1)
```

```python
import sys
from asmlib import *

NAME = "gated_mix__linear_kernel_hedgehog__dense_activation_mish__prompt"
CFG = dict(diag=0, map1="a4b2", rot1=1, rot2=1, pf_code=1, DA=6)
for a in sys.argv[2:]:
    k, val = a.split("=")
    CFG[k] = int(val) if val.lstrip("-").isdigit() else val

FLG = 0; KVP = 65536; KVS = 4352; A2 = 1 << 20; TTS = 144 * 1024; STAMP = 12 << 20; WSN = 16 << 20
WSLOTS = 11; MISC = WSLOTS * 8192; GW = MISC; SIDE = MISC + 1024; XB = 98304; KVL = 0
RS = 272; PS = 64 * RS
LOG2E = 0x3fb8aa3b
sW_, sTYPE, sR, sC, sROT = 3, 4, 5, 6, 7
sX, sWD, sWS, sT, sW2, sWO, sOUT = 8, 12, 16, 20, 24, 28, 32
pX, pQKV, pPHI, pWO, pBX, pW1, pB1, pW2, pGW, pOUT, pDBG, pWS = 36, 38, 40, 42, 44, 46, 48, 50, 52, 54, 56, 58
sPC = 60
sKX = 62
sKW = 70
sXM, sWM, sSET, sTG, sSTR = 78, 79, 80, 81, 82
sT0, sT1, sT2, sT3 = 83, 84, 85, 86
sL2E, sGS, sU0 = 87, 88, 89
sRT, sCT = 97, 98
sST = 36
vX0, vX1, vWO_, vAX, vAW, vAW2, vAG, vL16, vGS, vB1, vBQ, vOQ, vPHI = 1, 2, 3, 4, 8, 9, 10, 11, 12, 13, 16, 20, 24
vT = 32
vWF = 80; vA = 96; vB = 112; vXF = 128
vINIT = 0

I = Ins
stamp_n = [0]
def stamp(name):
    if not CFG["diag"]: return []
    k = STAMPS.index(name)
    return [I("s_memrealtime s[100:101]"), Wait(lg=0), I("v_writelane_b32 %s, s100, %d" % (v(vSTAMP), k))]
STAMPS = ["entry", "karg", "c0", "s0", "s1", "s2", "s3", "pub1", "kvseen", "gath", "pub2", "p2pf", "actseen", "oseen", "p2end", "end"]
vSTAMP = 79

def srd(dst, ptr, nrec):
    o = [I("s_mov_b32 %s, %s" % (s(dst), s(ptr))), I("s_mov_b32 %s, %s" % (s(dst + 1), s(ptr + 1)))]
    if isinstance(nrec, str): o.append(I("s_mov_b32 %s, %s" % (s(dst + 2), nrec)))
    else: o.append(I("s_mov_b32 %s, 0x%x" % (s(dst + 2), nrec)))
    o.append(I("s_mov_b32 %s, 0x20000" % s(dst + 3)))
    return o

def dma_x(j):
    slot = j & 3
    return [I("s_add_u32 m0, %s, 0x%x" % (s(sXM), slot * 16384), glue=True),
            I("buffer_load_dwordx4 %s, %s, %s offen lds" % (v(vX0), s(sX, 4), s(sKX + j)), tag=("x", j), glue=True),
            I("buffer_load_dwordx4 %s, %s, %s offen offset:1024 lds" % (v(vX1), s(sX, 4), s(sKX + j)), tag=("x", j))]

def dma_w(n):
    u, j = divmod(n, 8)
    o = []
    if j == 0 and u > 0:
        o.append(I("v_add_u32 %s, %s, %s" % (v(vWO_), s(sU0 + u - 1), v(vWO_)), glue=True))
    o += [I("s_add_u32 m0, %s, 0x%x" % (s(sWM), (n % WSLOTS) * 8192), glue=True),
          I("buffer_load_dwordx4 %s, %s, %s offen lds" % (v(vWO_), s(sWD, 4), s(sKW + j)), tag=("w", n))]
    return o

def wread(n, sp, flip=None):
    slot = n % WSLOTS
    base, off = (vAW, slot * 8192) if slot < 6 else (vAW2, (slot - 6) * 8192)
    f = vWF + 4 * ((4 * n + sp) & 3)
    return [I("ds_read_b64_tr_b16 %s, %s offset:%d" % (v(f + 2 * u, 2), v(base), off + sp * 2048 + u * 512), tag=("wf", n, sp)) for u in range(2)]

def mfma(d, a, b, c):
    return I("v_mfma_f32_32x32x16_bf16 %s, %s, %s, %s" % (v(d, 16), v(a, 4), v(b, 4), "0" if c is None else v(c, 16)))

def prologue(npf):
    o = []
    A = o.append
    A(I("s_cmp_ge_u32 s2, 0x100")); A(I("s_cbranch_scc1 L_end"))
    A(I("s_load_dwordx16 s[36:51], s[0:1], 0")); A(I("s_load_dwordx8 s[52:59], s[0:1], 64"))
    if CFG["diag"]:
        A(I("v_mov_b32 %s, 0" % v(vSTAMP)))
        A(I("s_memrealtime s[100:101]"))
    A(I("v_lshlrev_b32 %s, 4, v0" % v(vT)))
    if CFG["pf_code"]:
        A(I("s_getpc_b64 %s" % s(sPC, 2)))
        for n in range(npf):
            A(I("global_load_dwordx4 %s, %s, %s" % (v(vXF + 4 * n, 4), v(vT), s(sPC, 2)), tag="pf"))
            if n + 1 < npf:
                A(I("s_add_u32 %s, %s, 0x2000" % (s(sPC), s(sPC)))); A(I("s_addc_u32 %s, %s, 0" % (s(sPC + 1), s(sPC + 1))))
    A(I("v_lshrrev_b32 %s, 6, v0" % v(vT + 1)))
    A(I("v_and_b32 v0, 63, v0"))
    A(I("v_readfirstlane_b32 %s, %s" % (s(sW_), v(vT + 1))))
    A(I("s_lshr_b32 %s, s2, 7" % s(sTYPE)))
    m = CFG["map1"]
    if m == "a4b2":
        A(I("s_bfe_u32 %s, s2, 0x20003" % s(sT0)))
        A(I("s_bfe_u32 %s, s2, 0x20005" % s(sT1)))
        A(I("s_and_b32 %s, s2, 3" % s(sR))); A(I("s_lshl2_add_u32 %s, %s, %s" % (s(sR), s(sR), s(sT0))))
        A(I("s_bfe_u32 %s, s2, 0x10002" % s(sC))); A(I("s_lshl2_add_u32 %s, %s, %s" % (s(sC), s(sC), s(sT1))))
        A(I("s_lshl1_add_u32 %s, %s, %s" % (s(sROT), s(sT0), s(sT1))))
        A(I("s_lshl2_add_u32 %s, %s, %s" % (s(sROT), s(sTYPE), s(sROT))))
    elif m == "a2b4":
        A(I("s_bfe_u32 %s, s2, 0x30003" % s(sT0)))
        A(I("s_bfe_u32 %s, s2, 0x10006" % s(sT1)))
        A(I("s_and_b32 %s, s2, 1" % s(sR))); A(I("s_lshl3_add_u32 %s, %s, %s" % (s(sR), s(sR), s(sT0))))
        A(I("s_bfe_u32 %s, s2, 0x20001" % s(sC))); A(I("s_lshl1_add_u32 %s, %s, %s" % (s(sC), s(sC), s(sT1))))
        A(I("s_lshl1_add_u32 %s, %s, %s" % (s(sROT), s(sT1), s(sT0))))
        A(I("s_lshl2_add_u32 %s, %s, %s" % (s(sROT), s(sTYPE), s(sROT))))
    elif m == "a8":
        A(I("s_bfe_u32 %s, s2, 0x10003" % s(sT0)))
        A(I("s_bfe_u32 %s, s2, 0x30004" % s(sC)))
        A(I("s_and_b32 %s, s2, 7" % s(sR))); A(I("s_lshl1_add_u32 %s, %s, %s" % (s(sR), s(sR), s(sT0))))
        A(I("s_lshl2_add_u32 %s, %s, %s" % (s(sROT), s(sT0), s(sC))))
    if CFG["rot1"]: A(I("s_and_b32 %s, %s, 7" % (s(sROT), s(sROT))))
    else: A(I("s_mov_b32 %s, 0" % s(sROT)))
    A(I("s_cmp_eq_u32 %s, 0" % s(sTYPE)))
    A(I("s_cselect_b32 %s, 0xc00, %s" % (s(sSTR), "0xc00")) if False else I("s_movk_i32 %s, 0xe00" % s(sSTR)))
    A(I("s_cmov_b32 %s, 0xc00" % s(sSTR)))
    A(I("v_lshrrev_b32 %s, 3, v0" % v(vT)))
    A(I("v_and_b32 %s, 7, v0" % v(vT + 1)))
    A(I("v_lshrrev_b32 %s, 4, v0" % v(vT + 2)))
    A(I("s_lshl_b32 %s, %s, 3" % (s(sT0), s(sR)))); A(I("s_add_u32 %s, %s, %s" % (s(sT0), s(sT0), s(sW_))))
    A(I("s_lshl_b32 %s, %s, 14" % (s(sT0), s(sT0))))
    A(I("v_xor_b32 %s, %s, %s" % (v(vT + 3), v(vT + 1), v(vT + 2))))
    A(I("v_lshlrev_b32 %s, 4, %s" % (v(vT + 3), v(vT + 3))))
    A(I("v_lshl_add_u32 %s, %s, 10, %s" % (v(vX0), v(vT), v(vT + 3))))
    A(I("v_add_u32 %s, %s, %s" % (v(vX0), s(sT0), v(vX0))))
    A(I("v_xor_b32 %s, 64, %s" % (v(vX1), v(vX0))))
    A(I("v_add_u32 %s, 0x1c00, %s" % (v(vX1), v(vX1))))
    A(I("v_and_b32 %s, 1, %s" % (v(vT + 2), v(vT + 2))))
    A(I("v_lshlrev_b32 %s, 2, %s" % (v(vT + 2), v(vT + 2))))
    A(I("v_xor_b32 %s, %s, %s" % (v(vT + 2), v(vT + 1), v(vT + 2))))
    A(I("s_lshl_b32 %s, %s, 3" % (s(sT0), s(sW_))))
    A(I("v_add_u32 %s, %s, %s" % (v(vT), s(sT0), v(vT))))
    A(I("v_mul_u32_u24 %s, %s, %s" % (v(vT), s(sSTR), v(vT))))
    A(I("v_lshl_add_u32 %s, %s, 4, %s" % (v(vWO_), v(vT + 2), v(vT))))
    A(I("s_lshr_b32 %s, %s, 1" % (s(sT0), s(sC)))); A(I("s_mul_i32 %s, %s, 7" % (s(sT0), s(sT0))))
    A(I("s_and_b32 %s, %s, 1" % (s(sT1), s(sC))))
    A(I("s_lshl2_add_u32 %s, %s, %s" % (s(sT2), s(sT1), s(sT0))))
    A(I("s_add_u32 %s, %s, 8" % (s(sT3), s(sC))))
    A(I("s_cmp_eq_u32 %s, 0" % s(sTYPE)))
    A(I("s_cselect_b32 %s, %s, %s" % (s(sT3), s(sT3), s(sT2))))
    A(I("s_lshl_b32 %s, %s, 7" % (s(sT3), s(sT3))))
    A(I("v_add_u32 %s, %s, %s" % (v(vWO_), s(sT3), v(vWO_))))
    A(I("s_lshl_b32 %s, %s, 11" % (s(sXM), s(sW_)))); A(I("s_add_u32 %s, %s, 0x%x" % (s(sXM), s(sXM), XB)))
    A(I("s_lshl_b32 %s, %s, 10" % (s(sWM), s(sW_))))
    A(I("s_lshl_b32 %s, %s, 6" % (s(sSTR), s(sSTR))))
    def kk(j):
        return [I("s_add_u32 %s, %s, %d" % (s(sKX + j), s(sROT), j)), I("s_and_b32 %s, %s, 7" % (s(sKX + j), s(sKX + j))),
                I("s_mul_i32 %s, %s, %s" % (s(sKW + j), s(sKX + j), s(sSTR))), I("s_lshl_b32 %s, %s, 7" % (s(sKX + j), s(sKX + j)))]
    o += kk(0) + kk(1)
    A(I("v_lshlrev_b32 %s, 4, v0" % v(vL16)))
    A(Wait(lg=0))
    if CFG["diag"]: A(I("v_writelane_b32 %s, s100, 0" % v(vSTAMP)))
    o += stamp("karg")
    o += srd(sX, pX, 2048 * 1024)
    A(I("s_cmp_eq_u32 %s, 0" % s(sTYPE)))
    A(I("s_cselect_b32 %s, %s, %s" % (s(sWD), s(pQKV), s(pW1)))); A(I("s_cselect_b32 %s, %s, %s" % (s(sWD + 1), s(pQKV + 1), s(pW1 + 1))))
    A(I("s_mov_b32 %s, 0x1c0000" % s(sWD + 2))); A(I("s_cmov_b32 %s, 0x180000" % s(sWD + 2)))
    A(I("s_mov_b32 %s, 0x20000" % s(sWD + 3)))
    o += dma_x(0) + dma_w(0)
    A(I("s_cmp_eq_u32 %s, 0" % s(sTYPE)))
    A(I("s_cselect_b32 %s, %s, %s" % (s(sT), s(pPHI), s(pB1)))); A(I("s_cselect_b32 %s, %s, %s" % (s(sT + 1), s(pPHI + 1), s(pB1 + 1))))
    A(I("s_movk_i32 %s, 0xe00" % s(sT + 2))); A(I("s_cmov_b32 %s, 0x4000" % s(sT + 2)))
    A(I("s_mov_b32 %s, 0x20000" % s(sT + 3)))
    A(I("s_lshl_b32 %s, %s, 7" % (s(sT0), s(sT0))))
    A(I("s_lshl_b32 %s, %s, 11" % (s(sT3), s(sC))))
    A(I("s_cmp_eq_u32 %s, 0" % s(sTYPE)))
    A(I("s_cselect_b32 %s, %s, %s" % (s(sT0), s(sT3), s(sT0))))
    A(I("s_lshl_b32 %s, %s, 8" % (s(sT3), s(sW_))))
    A(I("s_add_u32 %s, %s, %s" % (s(sT0), s(sT0), s(sT3))))
    A(I("s_add_u32 m0, %s, 0x%x" % (s(sT3), SIDE)))
    A(I("s_mov_b64 exec, 0xffff"))
    A(I("buffer_load_dwordx4 %s, %s, %s offen lds" % (v(vL16), s(sT, 4), s(sT0)), tag="side"))
    o += srd(sOUT, pGW, 1024)
    A(I("s_add_u32 %s, %s, %s" % (s(sT0), s(sROT), s(sW_)))); A(I("s_and_b32 %s, %s, 7" % (s(sT0), s(sT0))))
    A(I("s_lshl_b32 %s, %s, 7" % (s(sT0), s(sT0))))
    A(I("s_lshl_b32 %s, %s, 7" % (s(sT3), s(sW_)))); A(I("s_add_u32 m0, %s, 0x%x" % (s(sT3), GW)))
    A(I("s_mov_b64 exec, 0xff"))
    A(I("buffer_load_dwordx4 %s, %s, %s offen lds" % (v(vL16), s(sOUT, 4), s(sT0)), tag="side"))
    A(I("s_mov_b64 exec, -1"))
    o += dma_x(1) + dma_w(1)
    o += kk(2) + dma_x(2) + dma_w(2) + kk(3) + dma_x(3) + dma_w(3)
    for q in range(4): A(I("v_mov_b32 %s, 0" % v(vBQ + q)))
    o += srd(sWS, pWS, "0")
    A(I("s_cmp_eq_u32 s2, 0")); A(I("s_cmov_b32 %s, 0x2000" % s(sWS + 2)))
    A(I("buffer_store_dwordx4 %s, %s, %s, %s offen sc1" % (v(vBQ, 4), v(vL16), s(sWS, 4), s(sWM)), tag="finit"))
    A(I("s_mov_b32 %s, 0x%x" % (s(sWS + 2), WSN)))
    for j in range(4, 8): o += kk(j)
    A(I("s_cmp_eq_u32 %s, 0" % s(sTYPE)))
    A(I("s_movk_i32 %s, 0x80" % s(sU0))); A(I("s_cmov_b32 %s, 0x400" % s(sU0)))
    A(I("s_movk_i32 %s, 0x80" % s(sU0 + 1))); A(I("s_cmov_b32 %s, 0xfffff800" % s(sU0 + 1)))
    A(I("s_cmp_eq_u32 %s, 0" % s(sT1)))
    A(I("s_mov_b32 %s, 0xfffffe80" % s(sU0 + 2))); A(I("s_cmov_b32 %s, 0x80" % s(sU0 + 2)))
    A(I("s_lshr_b32 %s, %s, 2" % (s(sSET), s(sW_)))); A(I("s_and_b32 %s, %s, 3" % (s(sTG), s(sW_))))
    h, t5, a0, a1 = vT, vT + 1, vT + 2, vT + 3
    A(I("v_lshrrev_b32 %s, 5, v0" % v(h))); A(I("v_and_b32 %s, 31, v0" % v(t5)))
    A(I("v_lshlrev_b32 %s, 4, %s" % (v(vAG), v(h)))); A(I("v_add_u32 %s, 0x%x, %s" % (v(vAG), GW, v(vAG))))
    A(I("v_bfe_u32 %s, v0, 1, 3" % v(a0)))
    A(I("v_xor_b32 %s, %s, %s" % (v(a0), v(a0), v(h))))
    A(I("s_lshl_b32 %s, %s, 12" % (s(sT0), s(sTG)))); A(I("s_add_u32 %s, %s, 0x%x" % (s(sT0), s(sT0), XB)))
    A(I("v_lshlrev_b32 %s, 7, %s" % (v(a1), v(t5)))); A(I("v_add_u32 %s, %s, %s" % (v(a1), s(sT0), v(a1))))
    for sp in range(4):
        A(I("v_xor_b32 %s, %d, %s" % (v(vAX + sp), 2 * sp, v(a0))))
        A(I("v_lshl_add_u32 %s, %s, 4, %s" % (v(vAX + sp), v(vAX + sp), v(a1))))
    A(I("v_bfe_u32 %s, v0, 2, 2" % v(a0)))
    A(I("v_lshl_add_u32 %s, %s, 3, %s" % (v(a1), v(h), v(a0))))
    A(I("v_lshlrev_b32 %s, 7, %s" % (v(vAW), v(a1))))
    A(I("v_lshrrev_b32 %s, 1, %s" % (v(a0), v(a0)))); A(I("v_xor_b32 %s, %s, %s" % (v(a0), s(sSET), v(a0))))
    A(I("v_lshl_add_u32 %s, %s, 6, %s" % (v(vAW), v(a0), v(vAW))))
    A(I("v_bfe_u32 %s, v0, 4, 1" % v(a0))); A(I("v_lshl_add_u32 %s, %s, 5, %s" % (v(vAW), v(a0), v(vAW))))
    A(I("v_and_b32 %s, 3, v0" % v(a0))); A(I("v_lshl_add_u32 %s, %s, 3, %s" % (v(vAW), v(a0), v(vAW))))
    A(I("v_add_u32 %s, 0x%x, %s" % (v(vAW2), 6 * 8192, v(vAW))))
    A(I("s_lshl_b32 %s, %s, 9" % (s(sT0), s(sT1)))); A(I("s_lshl_b32 %s, %s, 6" % (s(sT3), s(sSET))))
    A(I("s_add_u32 %s, %s, %s" % (s(sT0), s(sT0), s(sT3)))); A(I("s_add_u32 %s, %s, 0x%x" % (s(sT0), s(sT0), SIDE)))
    A(I("v_lshl_add_u32 %s, %s, 1, %s" % (v(vPHI), v(t5), s(sT0))))
    A(I("s_lshl_b32 %s, %s, 6" % (s(sT0), s(sT1)))); A(I("s_add_u32 %s, %s, 0x%x" % (s(sT0), s(sT0), SIDE + 384)))
    A(I("v_lshl_add_u32 %s, %s, 1, %s" % (v(vPHI + 1), v(t5), s(sT0))))
    A(I("v_sub_u32 %s, 1, %s" % (v(vOQ), v(h)))); A(I("v_mul_u32_u24 %s, 0x3f80, %s" % (v(vOQ), v(vOQ))))
    for q in range(1, 4): A(I("v_mov_b32 %s, 0" % v(vOQ + q)))
    A(I("s_lshl_b32 %s, %s, 12" % (s(sT2), s(sT2)))); A(I("s_lshl_b32 %s, %s, 11" % (s(sT3), s(sSET))))
    A(I("s_add_u32 %s, %s, %s" % (s(sT2), s(sT2), s(sT3)))); A(I("s_add_u32 %s, %s, 0x%x" % (s(sU0 + 3), s(sT2), A2)))
    A(I("s_add_u32 %s, %s, 0x1000" % (s(sU0 + 4), s(sU0 + 3)))); A(I("s_add_u32 %s, %s, 0x2000" % (s(sU0 + 5), s(sU0 + 3))))
    A(I("s_lshr_b32 %s, %s, 1" % (s(sT0), s(sC)))); A(I("s_mul_i32 %s, %s, 0x7000" % (s(sT0), s(sT0))))
    A(I("s_lshl_b32 %s, %s, 11" % (s(sT3), s(sT1)))); A(I("s_add_u32 %s, %s, %s" % (s(sT0), s(sT0), s(sT3))))
    A(I("s_add_u32 %s, %s, 0x%x" % (s(sU0 + 6), s(sT0), A2 + 0x3000)))
    A(I("s_mov_b32 %s, 0x%x" % (s(sL2E), LOG2E)))
    A(I("s_cmp_eq_u32 %s, 0" % s(sTYPE)))
    A(I("s_mov_b32 %s, 0x%x" % (s(sGS), LOG2E))); A(I("s_cmov_b32 %s, 0x%x" % (s(sGS), LOG2E | 0x80000000)))
    A(I("s_cselect_b32 %s, 0, 0xffff" % s(sT3)))
    A(I("s_and_b32 %s, s2, 7" % s(sRT))); A(I("s_bfe_u32 %s, s2, 0x20003" % s(sT0)))
    A(I("s_lshl2_add_u32 %s, %s, %s" % (s(sRT), s(sRT), s(sT0)))); A(I("s_lshr_b32 %s, s2, 5" % s(sCT)))
    return o

def stage0():
    o = []; A = o.append
    G = vT
    for j in range(8):
        vm = [("x", j), ("w", j)] + (["side"] if j == 0 else []) + (["finit"] if j == 4 else [])
        A(Wait(vm=vm)); A(I("s_barrier"))
        if j == 0: o += stamp("c0")
        if 1 <= j <= 4: o += dma_x(j + 3) + dma_w(j + 3)
        if j >= 5: o += dma_w(2 * j - 2) + dma_w(2 * j - 1)
        if j == 4:
            o += srd(sT, pDBG, "0")
            A(I("s_or_b32 %s, s2, %s" % (s(sT0), s(sW_)))); A(I("s_cmp_eq_u32 %s, 0" % s(sT0))); A(I("s_cmov_b32 %s, 4" % s(sT + 2)))
            A(I("v_mov_b32 %s, 1" % v(vT + 16)))
            A(I("buffer_store_dword %s, %s, %s, 0 offen sc1" % (v(vT + 16), v(vL16), s(sT, 4)), tag="dinit"))
        if j == 0:
            A(I("ds_read_u16 %s, %s" % (v(vBQ), v(vPHI)), tag="b0"))
            A(I("ds_read_u16 %s, %s offset:128" % (v(vB1), v(vPHI)), tag="b1"))
            A(I("ds_read_u16 %s, %s offset:256" % (v(vB1 + 1), v(vPHI)), tag="b1"))
            A(I("ds_read_u16 %s, %s" % (v(vB1 + 2), v(vPHI + 1)), tag="b1"))
        for sp in range(4):
            A(I("ds_read_b128 %s, %s offset:%d" % (v(vXF + 16 * j + 4 * sp, 4), v(vAX + sp), (j & 3) * 16384), tag=("xf", j, sp)))
            o += wread(j, sp)
            A(I("ds_read_b128 %s, %s offset:%d" % (v(G + 4 * sp, 4), v(vAG), j * 128 + sp * 32), tag=("gf", j, sp)))
        if j == 0:
            A(Wait(lg="b1")); A(I("v_and_b32 %s, %s, %s" % (v(vBQ), s(sT3), v(vBQ))))
            A(mfma(vA, vBQ, vOQ, None))
        for sp in range(4):
            xf = vXF + 16 * j + 4 * sp
            A(Wait(lg=("wf", j, sp) if False else [("wf", j, sp)]))
            A(mfma(vA, vWF + 4 * sp, xf, vA))
            A(Wait(lg=[("gf", j, sp)]))
            A(mfma(vB, G + 4 * sp, xf, None if (j == 0 and sp == 0) else vB))
    o += stamp("s0")
    return o

def beta(P, nmax):
    o = [Wait(vm=[("w", 2 * P), ("w", 2 * P + 1)], glue=True), I("s_barrier")]
    for n in (2 * P + 6, 2 * P + 7):
        if n < nmax: o += dma_w(n)
    return o

def kloop(u, acc, nmax, swap=False, init=None, last=False, do_mfma=True):
    o = []
    if init: o += init
    for st in range(32):
        g = 32 * u + st + 3
        if g % 8 == 0 and g // 32 < nmax // 8: o += beta(g // 8, nmax)
        if do_mfma and not (last and st + 3 >= 32): o += wread(g // 4, g % 4)
        n, sp = divmod(32 * u + st, 4)
        if do_mfma:
            wf = vWF + 4 * (st & 3); xf = vXF + 4 * st
            o.append(Wait(lg=[("wf", n, sp)], glue=True))
            c = acc if (st > 0 or init) else None
            o.append(mfma(acc, xf, wf, c) if swap else mfma(acc, wf, xf, c))
        o.append(Slot())
    return o

def enter_stage1(nmax):
    o = beta(4, nmax)
    for g in range(32, 35): o += wread(g // 4, g % 4)
    return o

def gate():
    a = vT + 16
    return [I("v_mul_f32 %s, %s, %s" % (v(a), s(sGS), v(vB))), I("v_exp_f32 %s, %s" % (v(a), v(a))),
            I("v_add_f32 %s, 1.0, %s" % (v(a), v(a))), I("v_rcp_f32 %s, %s" % (v(vGS), v(a)))]

def tt_base():
    return [I("s_lshl2_add_u32 %s, %s, %s" % (s(sT0), s(sR), s(sTG))), I("s_mul_i32 %s, %s, 0x%x" % (s(sT0), s(sT0), TTS)),
            I("v_add_u32 %s, %s, %s" % (v(vX0), s(sT0), v(vL16))),
            I("s_mov_b32 %s, 4" % s(sT + 2)),
            I("buffer_load_dword %s, off, %s, 0 sc1" % (v(vX1), s(sT, 4)), tag="initld")]

def check_init(lbl):
    return [Wait(vm="initld"), I("v_readfirstlane_b32 %s, %s" % (s(sT0), v(vX1))), I("s_movk_i32 %s, 0x7fff" % s(sT1)),
            I("%s_chk:" % lbl),
            I("s_cmp_lg_u32 %s, 0" % s(sT0)), I("s_cbranch_scc1 %s_ok" % lbl),
            I("s_sub_u32 %s, %s, 1" % (s(sT1), s(sT1))), I("s_cbranch_scc1 %s_ok" % lbl),
            I("buffer_load_dword %s, off, %s, 0 sc1" % (v(vX1), s(sT, 4)), tag="RAW"), I("s_waitcnt vmcnt(0)"),
            I("v_readfirstlane_b32 %s, %s" % (s(sT0), v(vX1))), I("s_branch %s_chk" % lbl),
            I("%s_ok:" % lbl)]

def signal(lbl, off_code, init=True):
    o = [I("s_cmp_lg_u32 %s, 0" % s(sW_)), I("s_cbranch_scc1 %s_skip" % lbl)]
    if init: o += check_init(lbl)
    o += off_code
    o += [I("v_mov_b32 %s, 1" % v(vT + 46)), I("s_mov_b64 exec, 1"),
          I("buffer_atomic_add %s, off, %s, %s sc1" % (v(vT + 46), s(sWS, 4), s(sT2)), tag="RAW"),
          I("s_mov_b64 exec, -1"), I("%s_skip:" % lbl)]
    return o

def flag_off(dw):
    return [I("s_lshr_b32 %s, %s, 1" % (s(sT2), s(sC))), I("s_lshl2_add_u32 %s, %s, %s" % (s(sT2), s(sR), s(sT2))),
            I("s_lshl_b32 %s, %s, 5" % (s(sT2), s(sT2))), I("s_and_b32 %s, %s, 1" % (s(sT3), s(sC))),
            I("s_add_u32 %s, %s, %s" % (s(sT2), s(sT2), s(sT3))), I("s_add_u32 %s, %s, %d" % (s(sT2), s(sT2), dw)),
            I("s_lshl_b32 %s, %s, 2" % (s(sT2), s(sT2)))]

def mish(acc, u):
    o = []; A = o.append
    T, U, Dd, PK = vT, vT + 4, vT + 8, vT + 12
    for g in range(4):
        r = [acc + 4 * g + i for i in range(4)]
        for i in range(4): A(I("v_mul_f32 %s, %s, %s" % (v(T + i), s(sL2E), v(r[i]))))
        for i in range(4): A(I("v_min_f32 %s, 0x42200000, %s" % (v(T + i), v(T + i))))
        for i in range(4): A(I("v_exp_f32 %s, %s" % (v(T + i), v(T + i))))
        for i in range(4): A(I("v_mul_f32 %s, %s, %s" % (v(r[i]), v(vGS), v(r[i]))))
        for i in range(4): A(I("v_add_f32 %s, 2.0, %s" % (v(U + i), v(T + i))))
        for i in range(4): A(I("v_fma_f32 %s, %s, %s, 2.0" % (v(Dd + i), v(T + i), v(U + i))))
        for i in range(4): A(I("v_rcp_f32 %s, %s" % (v(Dd + i), v(Dd + i))))
        for i in range(4): A(I("v_mul_f32 %s, %s, %s" % (v(U + i), v(T + i), v(U + i))))
        for i in range(4): A(I("v_mul_f32 %s, %s, %s" % (v(r[i]), v(U + i), v(r[i]))))
        for i in range(4): A(I("v_mul_f32 %s, %s, %s" % (v(r[i]), v(Dd + i), v(r[i]))))
        for i in range(2): A(I("v_cvt_pk_bf16_f32 %s, %s, %s" % (v(PK + 2 * g + i), v(r[2 * i]), v(r[2 * i + 1]))))
        if g & 1:
            A(I("buffer_store_dwordx4 %s, %s, %s, %s offen offset:%d sc1" % (v(PK + 4 * (g >> 1), 4), v(vX0), s(sWS, 4), s(sU0 + 3 + u), 1024 * (g >> 1)), tag=("act", u)))
    return o

def bias_init(acc, u):
    return [I("v_mov_b32 %s, %s" % (v(vBQ), v(vB1 + u - 1))), I("s_nop 1"), mfma(acc, vBQ, vOQ, None)]

def mlp_common():
    o = gate() + tt_base() + enter_stage1(32)
    o += weave(kloop(1, vB, 32, init=bias_init(vB, 1)), mish(vA, 0), 0, 30) + stamp("s1")
    k2 = kloop(2, vA, 32, init=bias_init(vA, 2), last=True)
    o += weave(k2, mish(vB, 1), 0, 30) + stamp("s2")
    return o

def mlp_a():
    o = [I("s_and_b32 %s, %s, 1" % (s(sT0), s(sC))), I("s_lshl_b32 %s, %s, 6" % (s(sT0), s(sT0))),
         I("v_xor_b32 %s, %s, %s" % (v(vAW), s(sT0), v(vAW))), I("v_xor_b32 %s, %s, %s" % (v(vAW2), s(sT0), v(vAW2)))]
    for g in range(96, 99): o += wread(g // 4, g % 4)
    o += weave(kloop(3, vB, 32, init=bias_init(vB, 3), last=True), mish(vA, 2), 0, 30) + stamp("s3")
    o += mish(vB, 3)
    return o

def mlp_b():
    return weave(kloop(3, vB, 32, last=True, do_mfma=False), mish(vA, 2), 0, 8) + stamp("s3")

def mlp_pub():
    return [Wait(vm=0), I("s_barrier")] + signal("L_mpub", flag_off(0)) + stamp("pub2")

P0, P1, KB, SC = vT, vT + 16, vT + 32, vT + 40
vPERM = 16

def att_setup():
    o = []; A = o.append
    a0, a1, a2 = SC, SC + 1, SC + 2
    A(I("v_lshrrev_b32 %s, 5, v0" % v(a0))); A(I("v_bfe_u32 %s, v0, 2, 2" % v(a1)))
    A(I("v_lshl_add_u32 %s, %s, 2, %s" % (v(a1), v(a0), v(a1)))); A(I("v_lshlrev_b32 %s, 5, %s" % (v(a1), v(a1))))
    A(I("v_bfe_u32 %s, v0, 4, 1" % v(a2))); A(I("v_lshl_add_u32 %s, %s, 4, %s" % (v(a1), v(a2), v(a1))))
    A(I("v_bfe_u32 %s, v0, 1, 1" % v(a2))); A(I("v_lshl_add_u32 %s, %s, 3, %s" % (v(a1), v(a2), v(a1))))
    A(I("s_lshl_b32 %s, %s, 10" % (s(sT0), s(sSET)))); A(I("s_add_u32 %s, %s, 0x%x" % (s(sT0), s(sT0), SIDE)))
    A(I("v_add_u32 %s, %s, %s" % (v(a1), s(sT0), v(a1))))
    for a in range(2):
        for u in range(2):
            A(I("ds_read_b64_tr_b16 %s, %s offset:%d" % (v(vPHI + 4 * a + 2 * u, 2), v(a1), a * 512 + u * 256), tag="phi"))
    A(I("v_and_b32 %s, 31, v0" % v(a1))); A(I("v_lshlrev_b32 %s, 2, %s" % (v(a0), v(a0))))
    A(I("v_sub_u32 %s, %s, %s" % (v(a1), v(a1), v(a0))))
    A(I("v_and_b32 %s, 1, %s" % (v(a0), v(a1)))); A(I("v_lshlrev_b32 %s, 4, %s" % (v(a0), v(a0))))
    A(I("s_movk_i32 %s, 0x3f80" % s(sT0))); A(I("v_lshlrev_b32 %s, %s, %s" % (v(a0), v(a0), s(sT0))))
    A(I("v_ashrrev_i32 %s, 1, %s" % (v(a1), v(a1))))
    for m in range(2):
        for q in range(4):
            tgt = ((2 * q & 3) + 8 * (q >> 1) + 16 * m) // 2
            A(I("v_cmp_eq_u32 vcc, %d, %s" % (tgt, v(a1)), glue=True)); A(I("s_nop 1", glue=True))
            A(I("v_cndmask_b32 %s, 0, %s, vcc" % (v(vPERM + 4 * m + q), v(a0))))
    A(I("v_bfe_u32 %s, v0, 2, 1" % v(a0))); A(I("v_lshlrev_b32 %s, 31, %s" % (v(a0), v(a0))))
    A(I("v_lshrrev_b32 %s, 16, %s" % (v(a1), v(a0)))); A(I("v_or_b32 %s, %s, %s" % (v(a0), v(a0), v(a1))))
    A(Wait(lg="phi", glue=True))
    for q in range(8): A(I("v_xor_b32 %s, %s, %s" % (v(vPHI + q), v(a0), v(vPHI + q))))
    return o

def softmax(P, out):
    o = []; A = o.append
    m, sm = SC + 4, SC + 5
    A(I("v_max3_f32 %s, %s, %s, %s" % (v(m), v(P), v(P + 1), v(P + 2))))
    for i in range(3, 15, 2): A(I("v_max3_f32 %s, %s, %s, %s" % (v(m), v(m), v(P + i), v(P + i + 1))))
    A(I("v_max_f32 %s, %s, %s" % (v(m), v(m), v(P + 15))))
    A(I("v_mul_f32 %s, %s, %s" % (v(m), s(sL2E), v(m))))
    for i in range(16): A(I("v_fma_f32 %s, %s, %s, -%s" % (v(P + i), v(P + i), s(sL2E), v(m))))
    for i in range(16): A(I("v_exp_f32 %s, %s" % (v(P + i), v(P + i))))
    A(I("v_add_f32 %s, %s, %s" % (v(sm), v(P), v(P + 1)))); A(I("v_add_f32 %s, %s, %s" % (v(m), v(P + 2), v(P + 3))))
    for i in range(4, 16, 2):
        A(I("v_add_f32 %s, %s, %s" % (v(sm), v(sm), v(P + i)))); A(I("v_add_f32 %s, %s, %s" % (v(m), v(m), v(P + i + 1))))
    A(I("v_add_f32 %s, %s, %s" % (v(sm), v(sm), v(m)))); A(I("v_rcp_f32 %s, %s" % (v(sm), v(sm)))); A(I("s_nop 0"))
    for i in range(16): A(I("v_mul_f32 %s, %s, %s" % (v(P + i), v(sm), v(P + i))))
    cv = [I("v_cvt_pk_bf16_f32 %s, %s, %s" % (v(out + q), v(P + 2 * q), v(P + 2 * q + 1))) for q in range(8)]
    return o, cv

def feat(acc):
    o = [I("v_cvt_pk_bf16_f32 %s, %s, %s" % (v(KB + q), v(acc + 2 * q), v(acc + 2 * q + 1))) for q in range(8)]
    o += [I("s_nop 0"), mfma(P0, vPHI, KB, None), mfma(P1, vPHI + 4, KB + 4, None)]
    return o

def cvt8(dst, src):
    return [I("v_cvt_pk_bf16_f32 %s, %s, %s" % (v(dst + q), v(src + 2 * q), v(src + 2 * q + 1))) for q in range(8)]

def k_epi():
    s0, c0 = softmax(P0, KB); s1, c1 = softmax(P1, KB)
    tr = [I("s_nop 0"), mfma(vA, KB, vPERM, None), mfma(vA, KB + 4, vPERM + 4, vA)]
    tr2 = [I("s_nop 0"), mfma(vA, KB, vPERM, None), mfma(vA, KB + 4, vPERM + 4, vA)]
    return feat(vA), s0 + c0 + tr + s1 + cvt8(P0, vA) + c1 + tr2, cvt8(P0 + 8, vA)

def v_part():
    o = []; A = o.append
    msk = SC; ad = SC + 1
    o += cvt8(KB, vB)
    A(I("v_bfe_i32 %s, v0, 4, 1" % v(msk)))
    A(I("s_mov_b32 %s, 0x3f803f80" % s(sT0)))
    for q in range(8): A(I("v_bfi_b32 %s, %s, %s, %s" % (v(P1 + q), v(msk), s(sT0), v(KB + q))))
    A(I("s_nop 0"))
    A(mfma(vB, P0, P1, None)); A(mfma(vB, P0 + 4, P1 + 4, vB))
    for q in range(8): A(I("v_bfi_b32 %s, %s, %s, %s" % (v(P1 + 8 + q), v(msk), v(KB + q), s(sT0))))
    A(I("s_lshl_b32 %s, %s, 15" % (s(sT1), s(sSET)))); A(I("s_lshl_b32 %s, %s, 12" % (s(sT2), s(sTG))))
    A(I("s_add_u32 %s, %s, %s" % (s(sT1), s(sT1), s(sT2)))); A(I("s_add_u32 %s, %s, 0x%x" % (s(sT1), s(sT1), XB)))
    A(I("v_add_u32 %s, %s, %s" % (v(ad), s(sT1), v(vL16))))
    for q in range(4): A(I("ds_write_b128 %s, %s offset:%d" % (v(ad), v(vB + 4 * q, 4), q * 1024), tag="kvw"))
    A(mfma(vB, P0 + 8, P1 + 8, None)); A(mfma(vB, P0 + 12, P1 + 12, vB))
    A(I("v_bfe_u32 %s, v0, 4, 1" % v(SC + 2))); A(I("s_bfe_u32 %s, %s, 0x10001" % (s(sT1), s(sW_))))
    A(I("v_cmp_eq_u32 %s, %s, %s" % (s(100, 2) if not CFG["diag"] else "s[60:61]", s(sT1), v(SC + 2))))
    A(I("v_lshrrev_b32 %s, 5, v0" % v(SC + 2))); A(I("v_and_b32 %s, 15, v0" % v(SC + 3)))
    A(I("v_lshl_add_u32 %s, %s, 4, %s" % (v(vAX), v(SC + 2), v(SC + 3)))); A(I("v_lshlrev_b32 %s, 4, %s" % (v(vAX), v(vAX))))
    A(I("s_lshl_b32 %s, %s, 9" % (s(sT1), s(sW_)))); A(I("v_add_u32 %s, %s, %s" % (v(vAX), s(sT1), v(vAX))))
    A(I("s_lshl_b32 %s, %s, 5" % (s(sT1), s(sW_)))); A(I("s_add_u32 %s, %s, 0x1000" % (s(sT1), s(sT1))))
    A(I("v_lshl_add_u32 %s, %s, 4, %s" % (v(SC + 2), v(SC + 2), s(sT1))))
    mk = s(100, 2) if not CFG["diag"] else "s[60:61]"
    A(I("v_cndmask_b32 %s, %s, %s, %s" % (v(vAX), v(SC + 2), v(vAX), mk)))
    A(I("v_cmp_eq_u32 vcc, 0, %s" % v(SC + 3))); A(I("s_or_b64 vcc, vcc, %s" % mk))
    A(I("v_mov_b32 %s, 0x%x" % (v(SC + 2), WSN)))
    A(I("v_cndmask_b32 %s, %s, %s, vcc" % (v(vAX + 1), v(SC + 2), v(vAX))))
    for q in range(4): A(I("ds_write_b128 %s, %s offset:%d" % (v(ad), v(vB + 4 * q, 4), 16384 + q * 1024), tag="kvw"))
    A(Wait(lg="kvw"))
    return o

def kv_reduce():
    o = []; A = o.append
    ad = SC + 1
    A(I("s_lshr_b32 %s, %s, 1" % (s(sT1), s(sW_)))); A(I("s_lshl_b32 %s, %s, 14" % (s(sT1), s(sT1))))
    A(I("s_and_b32 %s, %s, 1" % (s(sT2), s(sW_)))); A(I("s_lshl_b32 %s, %s, 11" % (s(sT2), s(sT2))))
    A(I("s_add_u32 %s, %s, %s" % (s(sT1), s(sT1), s(sT2)))); A(I("s_add_u32 %s, %s, 0x%x" % (s(sT1), s(sT1), XB)))
    A(I("v_add_u32 %s, %s, %s" % (v(ad), s(sT1), v(vL16))))
    for tg in range(4):
        for qq in range(2):
            A(I("ds_read_b128 %s, %s offset:%d" % (v(P0 + 8 * tg + 4 * qq, 4), v(ad), tg * 4096 + qq * 1024), tag=("kvr", tg)))
    A(I("s_lshl4_add_u32 %s, %s, %s" % (s(sT1), s(sC), s(sR)))); A(I("s_mul_i32 %s, %s, %d" % (s(sT1), s(sT1), KVS)))
    A(I("s_add_u32 %s, %s, 0x%x" % (s(sT1), s(sT1), KVP)))
    A(Wait(lg=[("kvr", 1)], glue=True))
    for q in range(8): A(I("v_add_f32 %s, %s, %s" % (v(P0 + q), v(P0 + q), v(P0 + 8 + q))))
    A(Wait(lg=[("kvr", 3)], glue=True))
    for q in range(8): A(I("v_add_f32 %s, %s, %s" % (v(P0 + 16 + q), v(P0 + 16 + q), v(P0 + 24 + q))))
    for q in range(8): A(I("v_add_f32 %s, %s, %s" % (v(P0 + q), v(P0 + q), v(P0 + 16 + q))))
    for q in range(4): A(I("v_cvt_pk_bf16_f32 %s, %s, %s" % (v(P0 + 8 + q), v(P0 + 2 * q), v(P0 + 2 * q + 1))))
    A(I("buffer_store_dwordx4 %s, %s, %s, %s offen sc1" % (v(P0 + 8, 4), v(vAX + 1), s(sWS, 4), s(sT1)), tag="kvst"))
    return o

def poll(lbl, nd, off_sreg, cond, cnt_reg):
    d = vT + 44
    ld = "buffer_load_dword%s %s, off, %s, %s sc1" % ("x2" if nd == 2 else "", v(d, nd), s(sWS, 4), s(off_sreg))
    o = [I("s_mov_b32 %s, 0x8000" % s(cnt_reg)), I("%s_spin:" % lbl), I(ld, tag="RAW"), I("s_waitcnt vmcnt(0)")]
    o += cond(d)
    o += [I("s_cbranch_scc1 %s_done" % lbl), I("s_sub_u32 %s, %s, 1" % (s(cnt_reg), s(cnt_reg))),
          I("s_cbranch_scc0 %s_spin" % lbl), I("%s_done:" % lbl), Wait(vm=0)]
    return o

def att_path():
    PQ = vXF + 96
    o = gate() + tt_base() + enter_stage1(24)
    f, mid, tail = k_epi()
    k1 = kloop(1, vB, 24, swap=True)
    k1 = weave(k1, att_setup() + f + [I("s_nop 0")] + mid, 0, 28)
    k1 = weave(k1, tail, 31, 31)
    o += k1 + stamp("s1")
    k2 = kloop(2, vA, 24, last=True)
    k2 = weave(k2, v_part(), 1, 12)
    k2 = weave(k2, kv_reduce(), 14, 22)
    o += k2 + stamp("s2")
    s0, c0 = softmax(P0, PQ); s1, c1 = softmax(P1, PQ + 8)
    o += feat(vA) + s0 + c0
    o += [Wait(vm="kvst"), I("s_barrier")]
    o += signal("L_kpub", [I("s_lshl_b32 %s, %s, 10" % (s(sT2), s(sC))), I("s_add_u32 %s, %s, 32" % (s(sT2), s(sT2)))])
    o += stamp("pub1")
    o += s1 + c1
    o += [I("s_cmp_lg_u32 %s, 0" % s(sW_)), I("s_cbranch_scc1 L_kv_skip")]
    o += poll("L_kv", 1, sT2, lambda d: [I("v_readfirstlane_b32 %s, %s" % (s(sT0), v(d))), I("s_cmp_ge_u32 %s, 16" % s(sT0))], sT1)
    o += [I("L_kv_skip:"), I("s_barrier")] + stamp("kvseen")
    o += [I("s_mul_i32 %s, %s, %d" % (s(sT1), s(sC), 16 * KVS)), I("s_add_u32 %s, %s, 0x%x" % (s(sT1), s(sT1), KVP))]
    for r in range(16):
        o.append(I("buffer_load_dwordx4 %s, %s, %s, %s offen sc1" % (v(vXF + 4 * r, 4), v(vAX), s(sWS, 4), s(sT1)), tag=("g", r)))
        if r < 15: o.append(I("s_add_u32 %s, %s, %d" % (s(sT1), s(sT1), KVS)))
    for r in range(16):
        o += [Wait(vm=[("g", r)]), mfma(vA, vPERM, vXF + 4 * r, vA if r else None)]
    o += [I("s_lshl_b32 %s, %s, 10" % (s(sT1), s(sW_))), I("v_add_u32 %s, %s, %s" % (v(SC), s(sT1), v(vL16))),
          I("s_lshl_b32 %s, %s, 12" % (s(sT1), s(sSET))), I("v_add_u32 %s, %s, %s" % (v(SC + 1), s(sT1), v(vL16)))]
    o += [I("v_cvt_pk_bf16_f32 %s, %s, %s" % (v(KB + q), v(vA + 2 * q), v(vA + 2 * q + 1))) for q in range(4)]
    o += [I("ds_write_b128 %s, %s offset:%d" % (v(SC), v(KB, 4), KVL), tag="kvl"), Wait(lg=0), I("s_barrier")]
    o += stamp("gath")
    for q in range(4): o.append(I("ds_read_b128 %s, %s offset:%d" % (v(P0 + 4 * q, 4), v(SC + 1), KVL + q * 1024), tag=("kvf", q)))
    o += [I("s_lshl1_add_u32 %s, %s, %s" % (s(sT1), s(sC), s(sSET))), I("s_lshl_b32 %s, %s, 11" % (s(sT1), s(sT1))),
          I("s_add_u32 %s, %s, 0x%x" % (s(sT1), s(sT1), A2 + 112 * 1024))]
    for a, acc in ((0, vA), (1, vB)):
        o += [Wait(lg=[("kvf", 2 * a + 1)]), mfma(acc, P0 + 8 * a, PQ + 8 * a, None), mfma(acc, P0 + 8 * a + 4, PQ + 8 * a + 4, acc)]
    for a, acc in ((0, vA), (1, vB)):
        den = acc + (8 if a == 0 else 0); num = acc + (0 if a == 0 else 8)
        o += [I("v_add_f32 %s, 0x358637bd, %s" % (v(SC + 2), v(den))), I("v_rcp_f32 %s, %s" % (v(SC + 2), v(SC + 2))), I("s_nop 0"),
              I("v_mul_f32 %s, %s, %s" % (v(SC + 2), v(vGS), v(SC + 2)))]
        o += [I("v_mul_f32 %s, %s, %s" % (v(num + q), v(SC + 2), v(num + q))) for q in range(8)]
        o += [I("v_cvt_pk_bf16_f32 %s, %s, %s" % (v(KB + 4 * a + q), v(num + 2 * q), v(num + 2 * q + 1))) for q in range(4)]
        o.append(I("buffer_store_dwordx4 %s, %s, %s, %s offen offset:%d sc1" % (v(KB + 4 * a, 4), v(vX0), s(sWS, 4), s(sT1), 1024 * a), tag="ost"))
    o += [Wait(vm=0), I("s_barrier")] + signal("L_opub", flag_off(2), init=False) + stamp("pub2")
    return o

def phase2():
    DA = CFG["DA"]; NW = 20
    o = []; A = o.append
    ACC = 128; AF = 32 if DA * 8 <= 40 else 192; WFR = 80
    vD0, vD1, vR0, vR1, vA0, vA1 = 1, 3, 4, 5, 6, 7
    sM, sKA, sKB, sFL, sLO, sHI = 62, 63, 64, 65, 66, 67
    A(I("s_cmp_eq_u32 %s, 0" % s(sSET))); A(I("s_cbranch_scc1 L_reduce"))
    o += srd(sW2, pW2, 1792 * 1024) + srd(sWO, pWO, 512 * 1024)
    a0, a1 = vT, vT + 1
    A(I("v_lshrrev_b32 %s, 3, v0" % v(a0))); A(I("v_bfe_u32 %s, v0, 4, 1" % v(a1))); A(I("v_lshlrev_b32 %s, 2, %s" % (v(a1), v(a1))))
    A(I("v_and_b32 %s, 7, v0" % v(vD0))); A(I("v_xor_b32 %s, %s, %s" % (v(vD0), v(vD0), v(a1))))
    A(I("v_lshlrev_b32 %s, 4, %s" % (v(vD0), v(vD0)))); A(I("v_lshl_add_u32 %s, %s, 10, %s" % (v(vD0), v(a0), v(vD0))))
    A(I("s_lshl_b32 %s, %s, 7" % (s(sT0), s(sCT)))); A(I("v_add_u32 %s, %s, %s" % (v(vD0), s(sT0), v(vD0))))
    A(I("v_add_u32 %s, 0x1c00, %s" % (v(vD1), v(vD0))))
    A(I("s_mul_i32 %s, %s, 0xa000" % (s(sM), s(sTG))))
    A(I("s_mul_i32 %s, %s, 28" % (s(sLO), s(sTG)))); A(I("s_add_u32 %s, %s, 28" % (s(sHI), s(sLO))))
    if CFG["rot2"]:
        A(I("s_and_b32 %s, %s, 3" % (s(sT0), s(sRT)))); A(I("s_lshl1_add_u32 %s, %s, %s" % (s(sT0), s(sT0), s(sCT))))
        A(I("s_mul_i32 %s, %s, 7" % (s(sT0), s(sT0)))); A(I("s_lshr_b32 %s, %s, 1" % (s(sT0), s(sT0))))
        A(I("s_cmp_ge_u32 %s, 28" % s(sT0))); A(I("s_cselect_b32 %s, 28, 0" % s(sT1))); A(I("s_sub_u32 %s, %s, %s" % (s(sT0), s(sT0), s(sT1))))
        A(I("s_add_u32 %s, %s, %s" % (s(sKB), s(sLO), s(sT0))))
    else: A(I("s_mov_b32 %s, %s" % (s(sKB), s(sLO))))
    A(I("s_mov_b32 %s, %s" % (s(sKA), s(sKB))))
    def adv(reg):
        return [I("s_add_u32 %s, %s, 1" % (s(reg), s(reg))), I("s_cmp_eq_u32 %s, %s" % (s(reg), s(sHI))), I("s_cmov_b32 %s, %s" % (s(reg), s(sLO)))]
    def wdma(i):
        r = []
        if i < 28: r.append(I("s_lshl_b32 %s, %s, 14" % (s(sT0), s(sKB)))); srdn = sW2
        else:
            r += [I("s_lshl3_add_u32 %s, %s, %d" % (s(sT0), s(sTG), i - 28)), I("s_lshl_b32 %s, %s, 14" % (s(sT0), s(sT0)))]; srdn = sWO
        r += [I("s_add_u32 m0, %s, 0x%x" % (s(sM), (i % NW) * 2048))]
        if i < 27: r += adv(sKB)
        else: r.append(I("s_nop 0"))
        r += [I("buffer_load_dwordx4 %s, %s, %s offen lds" % (v(vD0), s(srdn, 4), s(sT0)), tag=("W", i)),
              I("buffer_load_dwordx4 %s, %s, %s offen offset:1024 lds" % (v(vD1), s(srdn, 4), s(sT0)), tag=("W", i))]
        return r
    def aload(i):
        r = []
        if i < 28: r.append(I("s_lshl_b32 %s, %s, 10" % (s(sT1), s(sKA))))
        else: r += [I("s_lshl3_add_u32 %s, %s, %d" % (s(sT1), s(sTG), i - 28)), I("s_add_u32 %s, %s, 112" % (s(sT1), s(sT1))), I("s_lshl_b32 %s, %s, 10" % (s(sT1), s(sT1)))]
        if i < 27: r += adv(sKA)
        f = AF + 8 * (i % DA)
        r += [I("buffer_load_dwordx4 %s, %s, %s, %s offen sc1" % (v(f, 4), v(vA0), s(sWS, 4), s(sT1)), tag=("A", i)),
              I("buffer_load_dwordx4 %s, %s, %s, %s offen sc1" % (v(f + 4, 4), v(vA1), s(sWS, 4), s(sT1)), tag=("A", i))]
        return r
    def wrd(i):
        f = WFR + 8 * (i & 1)
        return [I("ds_read_b64_tr_b16 %s, %s offset:%d" % (v(f + 4 * t + 2 * u, 2), v(vR0 + t), (i % NW) * 2048 + u * 1024), tag=("F", i, t)) for t in range(2) for u in range(2)]
    for i in range(NW - 1): o += wdma(i)
    o += stamp("p2pf")
    A(I("v_lshrrev_b32 %s, 5, v0" % v(a0))); A(I("v_bfe_u32 %s, v0, 2, 2" % v(a1)))
    A(I("v_lshl_add_u32 %s, %s, 2, %s" % (v(a0), v(a0), v(a1)))); A(I("v_lshlrev_b32 %s, 7, %s" % (v(vR0), v(a0))))
    A(I("v_lshrrev_b32 %s, 1, %s" % (v(a1), v(a1)))); A(I("v_lshl_add_u32 %s, %s, 6, %s" % (v(vR0), v(a1), v(vR0))))
    A(I("v_bfe_u32 %s, v0, 4, 1" % v(a1))); A(I("v_lshl_add_u32 %s, %s, 5, %s" % (v(vR0), v(a1), v(vR0))))
    A(I("v_and_b32 %s, 3, v0" % v(a1))); A(I("v_lshl_add_u32 %s, %s, 3, %s" % (v(vR0), v(a1), v(vR0))))
    A(I("v_add_u32 %s, %s, %s" % (v(vR0), s(sM), v(vR0)))); A(I("v_xor_b32 %s, 64, %s" % (v(vR1), v(vR0))))
    A(I("s_mul_i32 %s, %s, 0x%x" % (s(sT0), s(sRT), 2 * TTS))); A(I("s_add_u32 %s, %s, 0x%x" % (s(sT0), s(sT0), A2)))
    A(I("v_add_u32 %s, %s, %s" % (v(vA0), s(sT0), v(vL16)))); A(I("v_add_u32 %s, 0x%x, %s" % (v(vA1), TTS, v(vA0))))
    A(I("s_lshr_b32 %s, %s, 1" % (s(sFL), s(sRT)))); A(I("s_lshl2_add_u32 %s, %s, %s" % (s(sFL), s(sFL), s(sTG)))); A(I("s_lshl_b32 %s, %s, 7" % (s(sFL), s(sFL))))
    o += check_init("L_p2i")
    both = lambda d: [I("v_min_u32 %s, %s, %s" % (v(d), v(d), v(d + 1))), I("s_nop 0"), I("v_readfirstlane_b32 %s, %s" % (s(sT0), v(d))), I("s_cmp_ge_u32 %s, 1" % s(sT0))]
    o += poll("L_act", 2, sFL, both, sT1) + stamp("actseen")
    for i in range(DA - 1): o += aload(i)
    o += wrd(0)
    for i in range(36):
        if i + DA - 1 == 28:
            A(I("s_add_u32 %s, %s, 8" % (s(sFL), s(sFL))))
            o += poll("L_o", 2, sFL, both, sT1) + stamp("oseen")
        if i + DA - 1 < 36: o += aload(i + DA - 1)
        if i + NW - 1 < 36: o += wdma(i + NW - 1)
        if i + 1 < 36:
            A(Wait(vm=[("W", i + 1)])); o += wrd(i + 1)
        A(Wait(vm=[("A", i)]))
        f = AF + 8 * (i % DA); wf = WFR + 8 * (i & 1)
        for t in range(2):
            A(Wait(lg=[("F", i, t)]))
            for th in range(2):
                acc = ACC + 16 * (2 * t + th)
                A(mfma(acc, wf + 4 * t, f + 4 * th, acc if i else None))
    o += stamp("p2end")
    A(I("s_barrier"))
    A(I("v_and_b32 %s, 31, v0" % v(a0))); A(I("v_mul_u32_u24 %s, %d, %s" % (v(a0), RS, v(a0))))
    A(I("v_lshrrev_b32 %s, 5, v0" % v(a1))); A(I("v_lshl_add_u32 %s, %s, 4, %s" % (v(a0), v(a1), v(a0))))
    A(I("s_mul_i32 %s, %s, %d" % (s(sT0), s(sTG), PS))); A(I("v_add_u32 %s, %s, %s" % (v(a0), s(sT0), v(a0))))
    for t in range(2):
        for th in range(2):
            for q in range(4):
                A(I("ds_write_b128 %s, %s offset:%d" % (v(a0), v(ACC + 16 * (2 * t + th) + 4 * q, 4), th * 32 * RS + t * 128 + q * 32), tag="red"))
    A(Wait(lg=0)); A(I("s_branch L_final"))
    tail = [I("L_reduce:"), I("s_barrier"), I("L_final:"), I("s_barrier")]
    B = tail.append
    B(I("v_lshrrev_b32 %s, 3, v0" % v(a0))); B(I("s_lshl_b32 %s, %s, 3" % (s(sT0), s(sW_)))); B(I("v_add_u32 %s, %s, %s" % (v(a0), s(sT0), v(a0))))
    B(I("v_and_b32 %s, 7, v0" % v(a1)))
    B(I("v_mul_u32_u24 %s, %d, %s" % (v(vT + 2), RS, v(a0)))); B(I("v_lshl_add_u32 %s, %s, 5, %s" % (v(vT + 2), v(a1), v(vT + 2))))
    for p in range(4):
        for q in range(2):
            B(I("ds_read_b128 %s, %s offset:%d" % (v(ACC + 8 * p + 4 * q, 4), v(vT + 2), p * PS + q * 16), tag=("r", p)))
    tail += srd(sOUT, pOUT, 2048 * 1024)
    B(I("v_lshlrev_b32 %s, 10, %s" % (v(a0), v(a0)))); B(I("v_lshl_add_u32 %s, %s, 4, %s" % (v(a0), v(a1), v(a0))))
    B(I("s_lshl_b32 %s, %s, 16" % (s(sT0), s(sRT)))); B(I("s_lshl_b32 %s, %s, 7" % (s(sT1), s(sCT)))); B(I("s_add_u32 %s, %s, %s" % (s(sT0), s(sT0), s(sT1))))
    B(Wait(lg=[("r", 1)]))
    for q in range(8): B(I("v_add_f32 %s, %s, %s" % (v(ACC + q), v(ACC + q), v(ACC + 8 + q))))
    B(Wait(lg=[("r", 3)]))
    for q in range(8): B(I("v_add_f32 %s, %s, %s" % (v(ACC + 16 + q), v(ACC + 16 + q), v(ACC + 24 + q))))
    for q in range(8): B(I("v_add_f32 %s, %s, %s" % (v(ACC + q), v(ACC + q), v(ACC + 16 + q))))
    for q in range(4): B(I("v_cvt_pk_bf16_f32 %s, %s, %s" % (v(ACC + 8 + q), v(ACC + 2 * q), v(ACC + 2 * q + 1))))
    B(I("buffer_store_dwordx4 %s, %s, %s, %s offen" % (v(ACC + 8, 4), v(a0), s(sOUT, 4), s(sT0)), tag="out"))
    if CFG["diag"]:
        B(Wait(vm=0)); tail += stamp("end")
        B(I("s_lshl3_add_u32 %s, s2, %s" % (s(sT0), s(sW_)))); B(I("s_lshl_b32 %s, %s, 8" % (s(sT0), s(sT0))))
        B(I("s_add_u32 %s, %s, 0x%x" % (s(sT0), s(sT0), STAMP))); B(I("v_lshlrev_b32 %s, 2, v0" % v(a0)))
        B(I("buffer_store_dword %s, %s, %s, %s offen" % (v(vSTAMP), v(a0), s(sWS, 4), s(sT0)), tag="st"))
    B(I("L_end:")); B(I("s_endpgm"))
    return o, tail

def build(npf):
    rep = []
    def fin(seq, vm, lg, hist):
        r, vm2, lg2 = resolve_waits(seq, vm, lg)
        r = pad_hazards(r, hist, rep)
        return r, vm2, lg2
    head, vm, lg = fin(prologue(npf) + stage0() + [I("s_cmp_lg_u32 %s, 0" % s(sTYPE)), I("s_cbranch_scc1 L_mlp")], [], [], [])
    att, vma, lga = fin(att_path() + [I("s_branch L_p2")], vm, lg, head)
    mc, vmm, lgm = fin([I("L_mlp:")] + mlp_common() + [I("s_cmp_lg_u32 %s, 0" % s(sSET)), I("s_cbranch_scc1 L_mlpb")], vm, lg, head)
    ma, vm1, lg1 = fin(mlp_a() + [Wait(vm=0, lg=0), I("s_branch L_mpub")], vmm, lgm, mc)
    mb, vm2, lg2 = fin([I("L_mlpb:")] + mlp_b() + [Wait(vm=0, lg=0)], vmm, lgm, mc)
    mp, vm3, lg3 = fin([I("L_mpub:")] + mlp_pub(), [], [], mb)
    assert not vma and not vm3, (vma, vm3)
    p2, tail = phase2()
    p2r, _, _ = fin([I("L_p2:")] + p2, ["initdummy"], [], mp)
    tl, _, _ = fin(tail, [], [], p2r)
    return head + att + mc + ma + mb + mp + p2r + tl, rep

HEADER = open("cdna_kernels/%s.s.ref" % NAME).read().split("; Override launch")[0]
def emit(path):
    npf = 3
    prog, rep = build(npf)
    txt = HEADER + "; @launch grid=(256,1,1) block=(512,1,1) lds=163840\n"
    txt += "; Generated by a Python script of my own (fused two-phase persistent kernel); see comments in the body.\n"
    txt += '.amdgcn_target "amdgcn-amd-amdhsa--gfx950"\n.text\n.globl %s_kernel\n.p2align 8\n.type %s_kernel,@function\n%s_kernel:\n' % (NAME, NAME, NAME)
    for i in prog:
        txt += (i.text if i.kind == "label" else "    " + i.text) + "\n"
    txt += "L_pad:\n.fill ((%d + 256 - (L_pad - %s_kernel)) / 4) * (((L_pad - %s_kernel) - (%d + 256)) >> 63 & 1), 4, 0xbf800000\n" % (npf * 8192, NAME, NAME, npf * 8192)
    txt += """.section .rodata,"a"
.p2align 6
.amdhsa_kernel %s_kernel
  .amdhsa_next_free_vgpr 256
  .amdhsa_next_free_sgpr 102
  .amdhsa_accum_offset 256
  .amdhsa_group_segment_fixed_size 0
  .amdhsa_kernarg_size 96
  .amdhsa_user_sgpr_count 2
  .amdhsa_user_sgpr_kernarg_segment_ptr 1
  .amdhsa_system_sgpr_workgroup_id_x 1
  .amdhsa_float_denorm_mode_32 3
.end_amdhsa_kernel
""" % NAME
    open(path, "w").write(txt)
    print("instructions:", len(prog), " padded hazards:", len(rep), "states", sum(n for n, _ in rep))
    if CFG.get("verbose"):
        for n, t in rep: print("  pad", n, t)

if __name__ == "__main__":
    emit(sys.argv[1])
```

```python
import sys
from asmlib import *

NAME = "gated_mix__linear_kernel_hedgehog__dense_activation_mish__prompt"
CFG = dict(diag=0, map1="a4b2", rot1=1, rot2=1, pf_code=1, DA=6)
for a in sys.argv[2:]:
    k, val = a.split("=")
    CFG[k] = int(val) if val.lstrip("-").isdigit() else val

FLG = 0; KVP = 65536; KVS = 4352; A2 = 1 << 20; TTS = 144 * 1024; STAMP = 12 << 20; WSN = 16 << 20
WSLOTS = 11; MISC = WSLOTS * 8192; GW = MISC; SIDE = MISC + 1024; XB = 98304; KVL = 0
RS = 272; PS = 64 * RS
LOG2E = 0x3fb8aa3b
sW_, sTYPE, sR, sC, sROT = 3, 4, 5, 6, 7
sX, sWD, sWS, sT, sW2, sWO, sOUT = 8, 12, 16, 20, 24, 28, 32
pX, pQKV, pPHI, pWO, pBX, pW1, pB1, pW2, pGW, pOUT, pDBG, pWS = 36, 38, 40, 42, 44, 46, 48, 50, 52, 54, 56, 58
sPC = 60
sKX = 62
sKW = 70
sXM, sWM, sSET, sTG, sSTR = 78, 79, 80, 81, 82
sT0, sT1, sT2, sT3 = 83, 84, 85, 86
sL2E, sGS, sU0 = 87, 88, 89
sRT, sCT = 97, 98
sST = 36
vX0, vX1, vWO_, vAX, vAW, vAW2, vAG, vL16, vGS, vB1, vBQ, vOQ, vPHI = 1, 2, 3, 4, 8, 9, 10, 11, 12, 13, 16, 20, 24
vT = 32
vWF = 80; vA = 96; vB = 112; vXF = 128
vINIT = 0

I = Ins
stamp_n = [0]
def stamp(name):
    if not CFG["diag"]: return []
    k = STAMPS.index(name)
    o = [I("s_memrealtime s[100:101]"), Wait(lg=0), I("v_writelane_b32 %s, s100, %d" % (v(vSTAMP), k))]
    if CFG["diag"] > 1:
        o += [I("s_memtime s[100:101]"), Wait(lg=0), I("v_writelane_b32 %s, s100, %d" % (v(vSTAMP), k + 16))]
    return o
STAMPS = ["entry", "karg", "c0", "s0", "s1", "s2", "s3", "pub1", "kvseen", "gath", "pub2", "p2pf", "actseen", "oseen", "p2end", "end"]
vSTAMP = 79

def srd(dst, ptr, nrec):
    o = [I("s_mov_b32 %s, %s" % (s(dst), s(ptr))), I("s_mov_b32 %s, %s" % (s(dst + 1), s(ptr + 1)))]
    if isinstance(nrec, str): o.append(I("s_mov_b32 %s, %s" % (s(dst + 2), nrec)))
    else: o.append(I("s_mov_b32 %s, 0x%x" % (s(dst + 2), nrec)))
    o.append(I("s_mov_b32 %s, 0x20000" % s(dst + 3)))
    return o

def dma_x(j):
    slot = j & 3
    return [I("s_add_u32 m0, %s, 0x%x" % (s(sXM), slot * 16384), glue=True),
            I("buffer_load_dwordx4 %s, %s, %s offen lds" % (v(vX0), s(sX, 4), s(sKX + j)), tag=("x", j), glue=True),
            I("buffer_load_dwordx4 %s, %s, %s offen offset:1024 lds" % (v(vX1), s(sX, 4), s(sKX + j)), tag=("x", j))]

def dma_w(n):
    u, j = divmod(n, 8)
    o = []
    if j == 0 and u > 0:
        o.append(I("v_add_u32 %s, %s, %s" % (v(vWO_), s(sU0 + u - 1), v(vWO_)), glue=True))
    o += [I("s_add_u32 m0, %s, 0x%x" % (s(sWM), (n % WSLOTS) * 8192), glue=True),
          I("buffer_load_dwordx4 %s, %s, %s offen lds" % (v(vWO_), s(sWD, 4), s(sKW + j)), tag=("w", n))]
    return o

def wread(n, sp, flip=None):
    slot = n % WSLOTS
    base, off = (vAW, slot * 8192) if slot < 6 else (vAW2, (slot - 6) * 8192)
    f = vWF + 4 * ((4 * n + sp) & 3)
    return [I("ds_read_b64_tr_b16 %s, %s offset:%d" % (v(f + 2 * u, 2), v(base), off + sp * 2048 + u * 512), tag=("wf", n, sp)) for u in range(2)]

def mfma(d, a, b, c):
    return I("v_mfma_f32_32x32x16_bf16 %s, %s, %s, %s" % (v(d, 16), v(a, 4), v(b, 4), "0" if c is None else v(c, 16)))

def prologue(npf):
    o = []
    A = o.append
    A(I("s_cmp_ge_u32 s2, 0x100")); A(I("s_cbranch_scc1 L_end"))
    A(I("s_load_dwordx16 s[36:51], s[0:1], 0")); A(I("s_load_dwordx8 s[52:59], s[0:1], 64"))
    if CFG["diag"]:
        A(I("v_mov_b32 %s, 0" % v(vSTAMP)))
        A(I("s_memrealtime s[100:101]"))
    A(I("v_lshlrev_b32 %s, 4, v0" % v(vT)))
    if CFG["pf_code"]:
        A(I("s_getpc_b64 %s" % s(sPC, 2)))
        for n in range(npf):
            A(I("global_load_dwordx4 %s, %s, %s" % (v(vXF + 4 * n, 4), v(vT), s(sPC, 2)), tag="pf"))
            if n + 1 < npf:
                A(I("s_add_u32 %s, %s, 0x2000" % (s(sPC), s(sPC)))); A(I("s_addc_u32 %s, %s, 0" % (s(sPC + 1), s(sPC + 1))))
    A(I("v_lshrrev_b32 %s, 6, v0" % v(vT + 1)))
    A(I("v_and_b32 v0, 63, v0"))
    A(I("v_readfirstlane_b32 %s, %s" % (s(sW_), v(vT + 1))))
    A(I("s_lshr_b32 %s, s2, 7" % s(sTYPE)))
    m = CFG["map1"]
    if m == "a4b2":
        A(I("s_bfe_u32 %s, s2, 0x20003" % s(sT0)))
        A(I("s_bfe_u32 %s, s2, 0x20005" % s(sT1)))
        A(I("s_and_b32 %s, s2, 3" % s(sR))); A(I("s_lshl2_add_u32 %s, %s, %s" % (s(sR), s(sR), s(sT0))))
        A(I("s_bfe_u32 %s, s2, 0x10002" % s(sC))); A(I("s_lshl2_add_u32 %s, %s, %s" % (s(sC), s(sC), s(sT1))))
        A(I("s_lshl1_add_u32 %s, %s, %s" % (s(sROT), s(sT0), s(sT1))))
        A(I("s_lshl2_add_u32 %s, %s, %s" % (s(sROT), s(sTYPE), s(sROT))))
    elif m == "a2b4":
        A(I("s_bfe_u32 %s, s2, 0x30003" % s(sT0)))
        A(I("s_bfe_u32 %s, s2, 0x10006" % s(sT1)))
        A(I("s_and_b32 %s, s2, 1" % s(sR))); A(I("s_lshl3_add_u32 %s, %s, %s" % (s(sR), s(sR), s(sT0))))
        A(I("s_bfe_u32 %s, s2, 0x20001" % s(sC))); A(I("s_lshl1_add_u32 %s, %s, %s" % (s(sC), s(sC), s(sT1))))
        A(I("s_lshl1_add_u32 %s, %s, %s" % (s(sROT), s(sT1), s(sT0))))
        A(I("s_lshl2_add_u32 %s, %s, %s" % (s(sROT), s(sTYPE), s(sROT))))
    elif m == "a8":
        A(I("s_bfe_u32 %s, s2, 0x10003" % s(sT0)))
        A(I("s_bfe_u32 %s, s2, 0x30004" % s(sC)))
        A(I("s_and_b32 %s, s2, 7" % s(sR))); A(I("s_lshl1_add_u32 %s, %s, %s" % (s(sR), s(sR), s(sT0))))
        A(I("s_lshl2_add_u32 %s, %s, %s" % (s(sROT), s(sT0), s(sC))))
    if CFG["rot1"]: A(I("s_and_b32 %s, %s, 7" % (s(sROT), s(sROT))))
    else: A(I("s_mov_b32 %s, 0" % s(sROT)))
    A(I("s_cmp_eq_u32 %s, 0" % s(sTYPE)))
    A(I("s_cselect_b32 %s, 0xc00, %s" % (s(sSTR), "0xc00")) if False else I("s_movk_i32 %s, 0xe00" % s(sSTR)))
    A(I("s_cmov_b32 %s, 0xc00" % s(sSTR)))
    A(I("v_lshrrev_b32 %s, 3, v0" % v(vT)))
    A(I("v_and_b32 %s, 7, v0" % v(vT + 1)))
    A(I("v_lshrrev_b32 %s, 4, v0" % v(vT + 2)))
    A(I("s_lshl_b32 %s, %s, 3" % (s(sT0), s(sR)))); A(I("s_add_u32 %s, %s, %s" % (s(sT0), s(sT0), s(sW_))))
    A(I("s_lshl_b32 %s, %s, 14" % (s(sT0), s(sT0))))
    A(I("v_xor_b32 %s, %s, %s" % (v(vT + 3), v(vT + 1), v(vT + 2))))
    A(I("v_lshlrev_b32 %s, 4, %s" % (v(vT + 3), v(vT + 3))))
    A(I("v_lshl_add_u32 %s, %s, 10, %s" % (v(vX0), v(vT), v(vT + 3))))
    A(I("v_add_u32 %s, %s, %s" % (v(vX0), s(sT0), v(vX0))))
    A(I("v_xor_b32 %s, 64, %s" % (v(vX1), v(vX0))))
    A(I("v_add_u32 %s, 0x1c00, %s" % (v(vX1), v(vX1))))
    A(I("v_and_b32 %s, 1, %s" % (v(vT + 2), v(vT + 2))))
    A(I("v_lshlrev_b32 %s, 2, %s" % (v(vT + 2), v(vT + 2))))
    A(I("v_xor_b32 %s, %s, %s" % (v(vT + 2), v(vT + 1), v(vT + 2))))
    A(I("s_lshl_b32 %s, %s, 3" % (s(sT0), s(sW_))))
    A(I("v_add_u32 %s, %s, %s" % (v(vT), s(sT0), v(vT))))
    A(I("v_mul_u32_u24 %s, %s, %s" % (v(vT), s(sSTR), v(vT))))
    A(I("v_lshl_add_u32 %s, %s, 4, %s" % (v(vWO_), v(vT + 2), v(vT))))
    A(I("s_lshr_b32 %s, %s, 1" % (s(sT0), s(sC)))); A(I("s_mul_i32 %s, %s, 7" % (s(sT0), s(sT0))))
    A(I("s_and_b32 %s, %s, 1" % (s(sT1), s(sC))))
    A(I("s_lshl2_add_u32 %s, %s, %s" % (s(sT2), s(sT1), s(sT0))))
    A(I("s_add_u32 %s, %s, 8" % (s(sT3), s(sC))))
    A(I("s_cmp_eq_u32 %s, 0" % s(sTYPE)))
    A(I("s_cselect_b32 %s, %s, %s" % (s(sT3), s(sT3), s(sT2))))
    A(I("s_lshl_b32 %s, %s, 7" % (s(sT3), s(sT3))))
    A(I("v_add_u32 %s, %s, %s" % (v(vWO_), s(sT3), v(vWO_))))
    A(I("s_lshl_b32 %s, %s, 11" % (s(sXM), s(sW_)))); A(I("s_add_u32 %s, %s, 0x%x" % (s(sXM), s(sXM), XB)))
    A(I("s_lshl_b32 %s, %s, 10" % (s(sWM), s(sW_))))
    A(I("s_lshl_b32 %s, %s, 6" % (s(sSTR), s(sSTR))))
    def kk(j):
        return [I("s_add_u32 %s, %s, %d" % (s(sKX + j), s(sROT), j)), I("s_and_b32 %s, %s, 7" % (s(sKX + j), s(sKX + j))),
                I("s_mul_i32 %s, %s, %s" % (s(sKW + j), s(sKX + j), s(sSTR))), I("s_lshl_b32 %s, %s, 7" % (s(sKX + j), s(sKX + j)))]
    o += kk(0) + kk(1)
    A(I("v_lshlrev_b32 %s, 4, v0" % v(vL16)))
    A(Wait(lg=0))
    if CFG["diag"]: A(I("v_writelane_b32 %s, s100, 0" % v(vSTAMP)))
    o += stamp("karg")
    o += srd(sX, pX, 2048 * 1024)
    A(I("s_cmp_eq_u32 %s, 0" % s(sTYPE)))
    A(I("s_cselect_b32 %s, %s, %s" % (s(sWD), s(pQKV), s(pW1)))); A(I("s_cselect_b32 %s, %s, %s" % (s(sWD + 1), s(pQKV + 1), s(pW1 + 1))))
    A(I("s_mov_b32 %s, 0x1c0000" % s(sWD + 2))); A(I("s_cmov_b32 %s, 0x180000" % s(sWD + 2)))
    A(I("s_mov_b32 %s, 0x20000" % s(sWD + 3)))
    o += dma_x(0) + dma_w(0)
    A(I("s_cmp_eq_u32 %s, 0" % s(sTYPE)))
    A(I("s_cselect_b32 %s, %s, %s" % (s(sT), s(pPHI), s(pB1)))); A(I("s_cselect_b32 %s, %s, %s" % (s(sT + 1), s(pPHI + 1), s(pB1 + 1))))
    A(I("s_movk_i32 %s, 0xe00" % s(sT + 2))); A(I("s_cmov_b32 %s, 0x4000" % s(sT + 2)))
    A(I("s_mov_b32 %s, 0x20000" % s(sT + 3)))
    A(I("s_lshl_b32 %s, %s, 7" % (s(sT0), s(sT0))))
    A(I("s_lshl_b32 %s, %s, 11" % (s(sT3), s(sC))))
    A(I("s_cmp_eq_u32 %s, 0" % s(sTYPE)))
    A(I("s_cselect_b32 %s, %s, %s" % (s(sT0), s(sT3), s(sT0))))
    A(I("s_lshl_b32 %s, %s, 8" % (s(sT3), s(sW_))))
    A(I("s_add_u32 %s, %s, %s" % (s(sT0), s(sT0), s(sT3))))
    A(I("s_add_u32 m0, %s, 0x%x" % (s(sT3), SIDE)))
    A(I("s_mov_b64 exec, 0xffff"))
    A(I("buffer_load_dwordx4 %s, %s, %s offen lds" % (v(vL16), s(sT, 4), s(sT0)), tag="side"))
    o += srd(sOUT, pGW, 1024)
    A(I("s_add_u32 %s, %s, %s" % (s(sT0), s(sROT), s(sW_)))); A(I("s_and_b32 %s, %s, 7" % (s(sT0), s(sT0))))
    A(I("s_lshl_b32 %s, %s, 7" % (s(sT0), s(sT0))))
    A(I("s_lshl_b32 %s, %s, 7" % (s(sT3), s(sW_)))); A(I("s_add_u32 m0, %s, 0x%x" % (s(sT3), GW)))
    A(I("s_mov_b64 exec, 0xff"))
    A(I("buffer_load_dwordx4 %s, %s, %s offen lds" % (v(vL16), s(sOUT, 4), s(sT0)), tag="side"))
    A(I("s_mov_b64 exec, -1"))
    o += dma_x(1) + dma_w(1)
    o += kk(2) + dma_x(2) + dma_w(2) + kk(3) + dma_x(3) + dma_w(3)
    for q in range(4): A(I("v_mov_b32 %s, 0" % v(vBQ + q)))
    o += srd(sWS, pWS, "0")
    A(I("s_cmp_eq_u32 s2, 0")); A(I("s_cmov_b32 %s, 0x2000" % s(sWS + 2)))
    A(I("buffer_store_dwordx4 %s, %s, %s, %s offen sc1" % (v(vBQ, 4), v(vL16), s(sWS, 4), s(sWM)), tag="finit"))
    A(I("s_mov_b32 %s, 0x%x" % (s(sWS + 2), WSN)))
    for j in range(4, 8): o += kk(j)
    A(I("s_cmp_eq_u32 %s, 0" % s(sTYPE)))
    A(I("s_movk_i32 %s, 0x80" % s(sU0))); A(I("s_cmov_b32 %s, 0x400" % s(sU0)))
    A(I("s_movk_i32 %s, 0x80" % s(sU0 + 1))); A(I("s_cmov_b32 %s, 0xfffff800" % s(sU0 + 1)))
    A(I("s_cmp_eq_u32 %s, 0" % s(sT1)))
    A(I("s_mov_b32 %s, 0xfffffe80" % s(sU0 + 2))); A(I("s_cmov_b32 %s, 0x80" % s(sU0 + 2)))
    A(I("s_lshr_b32 %s, %s, 2" % (s(sSET), s(sW_)))); A(I("s_and_b32 %s, %s, 3" % (s(sTG), s(sW_))))
    h, t5, a0, a1 = vT, vT + 1, vT + 2, vT + 3
    A(I("v_lshrrev_b32 %s, 5, v0" % v(h))); A(I("v_and_b32 %s, 31, v0" % v(t5)))
    A(I("v_lshlrev_b32 %s, 4, %s" % (v(vAG), v(h)))); A(I("v_add_u32 %s, 0x%x, %s" % (v(vAG), GW, v(vAG))))
    A(I("v_bfe_u32 %s, v0, 1, 3" % v(a0)))
    A(I("v_xor_b32 %s, %s, %s" % (v(a0), v(a0), v(h))))
    A(I("s_lshl_b32 %s, %s, 12" % (s(sT0), s(sTG)))); A(I("s_add_u32 %s, %s, 0x%x" % (s(sT0), s(sT0), XB)))
    A(I("v_lshlrev_b32 %s, 7, %s" % (v(a1), v(t5)))); A(I("v_add_u32 %s, %s, %s" % (v(a1), s(sT0), v(a1))))
    for sp in range(4):
        A(I("v_xor_b32 %s, %d, %s" % (v(vAX + sp), 2 * sp, v(a0))))
        A(I("v_lshl_add_u32 %s, %s, 4, %s" % (v(vAX + sp), v(vAX + sp), v(a1))))
    A(I("v_bfe_u32 %s, v0, 2, 2" % v(a0)))
    A(I("v_lshl_add_u32 %s, %s, 3, %s" % (v(a1), v(h), v(a0))))
    A(I("v_lshlrev_b32 %s, 7, %s" % (v(vAW), v(a1))))
    A(I("v_lshrrev_b32 %s, 1, %s" % (v(a0), v(a0)))); A(I("v_xor_b32 %s, %s, %s" % (v(a0), s(sSET), v(a0))))
    A(I("v_lshl_add_u32 %s, %s, 6, %s" % (v(vAW), v(a0), v(vAW))))
    A(I("v_bfe_u32 %s, v0, 4, 1" % v(a0))); A(I("v_lshl_add_u32 %s, %s, 5, %s" % (v(vAW), v(a0), v(vAW))))
    A(I("v_and_b32 %s, 3, v0" % v(a0))); A(I("v_lshl_add_u32 %s, %s, 3, %s" % (v(vAW), v(a0), v(vAW))))
    A(I("v_add_u32 %s, 0x%x, %s" % (v(vAW2), 6 * 8192, v(vAW))))
    A(I("s_lshl_b32 %s, %s, 9" % (s(sT0), s(sT1)))); A(I("s_lshl_b32 %s, %s, 6" % (s(sT3), s(sSET))))
    A(I("s_add_u32 %s, %s, %s" % (s(sT0), s(sT0), s(sT3)))); A(I("s_add_u32 %s, %s, 0x%x" % (s(sT0), s(sT0), SIDE)))
    A(I("v_lshl_add_u32 %s, %s, 1, %s" % (v(vPHI), v(t5), s(sT0))))
    A(I("s_lshl_b32 %s, %s, 6" % (s(sT0), s(sT1)))); A(I("s_add_u32 %s, %s, 0x%x" % (s(sT0), s(sT0), SIDE + 384)))
    A(I("v_lshl_add_u32 %s, %s, 1, %s" % (v(vPHI + 1), v(t5), s(sT0))))
    A(I("v_sub_u32 %s, 1, %s" % (v(vOQ), v(h)))); A(I("v_mul_u32_u24 %s, 0x3f80, %s" % (v(vOQ), v(vOQ))))
    for q in range(1, 4): A(I("v_mov_b32 %s, 0" % v(vOQ + q)))
    A(I("s_lshl_b32 %s, %s, 12" % (s(sT2), s(sT2)))); A(I("s_lshl_b32 %s, %s, 11" % (s(sT3), s(sSET))))
    A(I("s_add_u32 %s, %s, %s" % (s(sT2), s(sT2), s(sT3)))); A(I("s_add_u32 %s, %s, 0x%x" % (s(sU0 + 3), s(sT2), A2)))
    A(I("s_add_u32 %s, %s, 0x1000" % (s(sU0 + 4), s(sU0 + 3)))); A(I("s_add_u32 %s, %s, 0x2000" % (s(sU0 + 5), s(sU0 + 3))))
    A(I("s_lshr_b32 %s, %s, 1" % (s(sT0), s(sC)))); A(I("s_mul_i32 %s, %s, 0x7000" % (s(sT0), s(sT0))))
    A(I("s_lshl_b32 %s, %s, 11" % (s(sT3), s(sT1)))); A(I("s_add_u32 %s, %s, %s" % (s(sT0), s(sT0), s(sT3))))
    A(I("s_add_u32 %s, %s, 0x%x" % (s(sU0 + 6), s(sT0), A2 + 0x3000)))
    A(I("s_mov_b32 %s, 0x%x" % (s(sL2E), LOG2E)))
    A(I("s_cmp_eq_u32 %s, 0" % s(sTYPE)))
    A(I("s_mov_b32 %s, 0x%x" % (s(sGS), LOG2E))); A(I("s_cmov_b32 %s, 0x%x" % (s(sGS), LOG2E | 0x80000000)))
    A(I("s_cselect_b32 %s, 0, 0xffff" % s(sT3)))
    A(I("s_and_b32 %s, s2, 7" % s(sRT))); A(I("s_bfe_u32 %s, s2, 0x20003" % s(sT0)))
    A(I("s_lshl2_add_u32 %s, %s, %s" % (s(sRT), s(sRT), s(sT0)))); A(I("s_lshr_b32 %s, s2, 5" % s(sCT)))
    return o

def stage0():
    o = []; A = o.append
    G = vT
    for j in range(8):
        vm = [("x", j), ("w", j)] + (["side"] if j == 0 else []) + (["finit"] if j == 4 else [])
        A(Wait(vm=vm)); A(I("s_barrier"))
        if j == 0: o += stamp("c0")
        if 1 <= j <= 4: o += dma_x(j + 3) + dma_w(j + 3)
        if j >= 5: o += dma_w(2 * j - 2) + dma_w(2 * j - 1)
        if j == 4:
            o += srd(sT, pDBG, "0")
            A(I("s_or_b32 %s, s2, %s" % (s(sT0), s(sW_)))); A(I("s_cmp_eq_u32 %s, 0" % s(sT0))); A(I("s_cmov_b32 %s, 4" % s(sT + 2)))
            A(I("v_mov_b32 %s, 1" % v(vT + 16)))
            A(I("buffer_store_dword %s, %s, %s, 0 offen sc1" % (v(vT + 16), v(vL16), s(sT, 4)), tag="dinit"))
        if j == 0:
            A(I("ds_read_u16 %s, %s" % (v(vBQ), v(vPHI)), tag="b0"))
            A(I("ds_read_u16 %s, %s offset:128" % (v(vB1), v(vPHI)), tag="b1"))
            A(I("ds_read_u16 %s, %s offset:256" % (v(vB1 + 1), v(vPHI)), tag="b1"))
            A(I("ds_read_u16 %s, %s" % (v(vB1 + 2), v(vPHI + 1)), tag="b1"))
        for sp in range(4):
            A(I("ds_read_b128 %s, %s offset:%d" % (v(vXF + 16 * j + 4 * sp, 4), v(vAX + sp), (j & 3) * 16384), tag=("xf", j, sp)))
            o += wread(j, sp)
            A(I("ds_read_b128 %s, %s offset:%d" % (v(G + 4 * sp, 4), v(vAG), j * 128 + sp * 32), tag=("gf", j, sp)))
        if j == 0:
            A(Wait(lg="b1")); A(I("v_and_b32 %s, %s, %s" % (v(vBQ), s(sT3), v(vBQ))))
            A(mfma(vA, vBQ, vOQ, None))
        for sp in range(4):
            xf = vXF + 16 * j + 4 * sp
            A(Wait(lg=("wf", j, sp) if False else [("wf", j, sp)]))
            A(mfma(vA, vWF + 4 * sp, xf, vA))
            A(Wait(lg=[("gf", j, sp)]))
            A(mfma(vB, G + 4 * sp, xf, None if (j == 0 and sp == 0) else vB))
    o += stamp("s0")
    return o

def beta(P, nmax):
    o = [Wait(vm=[("w", 2 * P), ("w", 2 * P + 1)], glue=True), I("s_barrier")]
    for n in (2 * P + 6, 2 * P + 7):
        if n < nmax: o += dma_w(n)
    return o

def kloop(u, acc, nmax, swap=False, init=None, last=False, do_mfma=True):
    o = []
    if init: o += init
    for st in range(32):
        g = 32 * u + st + 3
        if g % 8 == 0 and g // 32 < nmax // 8: o += beta(g // 8, nmax)
        if do_mfma and not (last and st + 3 >= 32): o += wread(g // 4, g % 4)
        n, sp = divmod(32 * u + st, 4)
        if do_mfma:
            wf = vWF + 4 * (st & 3); xf = vXF + 4 * st
            o.append(Wait(lg=[("wf", n, sp)], glue=True))
            c = acc if (st > 0 or init) else None
            o.append(mfma(acc, xf, wf, c) if swap else mfma(acc, wf, xf, c))
        o.append(Slot())
    return o

def enter_stage1(nmax):
    o = beta(4, nmax)
    for g in range(32, 35): o += wread(g // 4, g % 4)
    return o

def gate():
    a = vT + 16
    return [I("v_mul_f32 %s, %s, %s" % (v(a), s(sGS), v(vB))), I("v_exp_f32 %s, %s" % (v(a), v(a))),
            I("v_add_f32 %s, 1.0, %s" % (v(a), v(a))), I("v_rcp_f32 %s, %s" % (v(vGS), v(a)))]

def tt_base():
    return [I("s_lshl2_add_u32 %s, %s, %s" % (s(sT0), s(sR), s(sTG))), I("s_mul_i32 %s, %s, 0x%x" % (s(sT0), s(sT0), TTS)),
            I("v_add_u32 %s, %s, %s" % (v(vX0), s(sT0), v(vL16))),
            I("s_mov_b32 %s, 4" % s(sT + 2)),
            I("buffer_load_dword %s, off, %s, 0 sc1" % (v(vX1), s(sT, 4)), tag="initld")]

def check_init(lbl):
    return [Wait(vm="initld"), I("v_readfirstlane_b32 %s, %s" % (s(sT0), v(vX1))), I("s_movk_i32 %s, 0x7fff" % s(sT1)),
            I("%s_chk:" % lbl),
            I("s_cmp_lg_u32 %s, 0" % s(sT0)), I("s_cbranch_scc1 %s_ok" % lbl),
            I("s_sub_u32 %s, %s, 1" % (s(sT1), s(sT1))), I("s_cbranch_scc1 %s_ok" % lbl),
            I("buffer_load_dword %s, off, %s, 0 sc1" % (v(vX1), s(sT, 4)), tag="RAW"), I("s_waitcnt vmcnt(0)"),
            I("v_readfirstlane_b32 %s, %s" % (s(sT0), v(vX1))), I("s_branch %s_chk" % lbl),
            I("%s_ok:" % lbl)]

def signal(lbl, off_code, init=True):
    o = [I("s_cmp_lg_u32 %s, 0" % s(sW_)), I("s_cbranch_scc1 %s_skip" % lbl)]
    if init: o += check_init(lbl)
    o += off_code
    o += [I("v_mov_b32 %s, 1" % v(vT + 46)), I("s_mov_b64 exec, 1"),
          I("buffer_atomic_add %s, off, %s, %s sc1" % (v(vT + 46), s(sWS, 4), s(sT2)), tag="RAW"),
          I("s_mov_b64 exec, -1"), I("%s_skip:" % lbl)]
    return o

def flag_off(dw):
    return [I("s_lshr_b32 %s, %s, 1" % (s(sT2), s(sC))), I("s_lshl2_add_u32 %s, %s, %s" % (s(sT2), s(sR), s(sT2))),
            I("s_lshl_b32 %s, %s, 5" % (s(sT2), s(sT2))), I("s_and_b32 %s, %s, 1" % (s(sT3), s(sC))),
            I("s_add_u32 %s, %s, %s" % (s(sT2), s(sT2), s(sT3))), I("s_add_u32 %s, %s, %d" % (s(sT2), s(sT2), dw)),
            I("s_lshl_b32 %s, %s, 2" % (s(sT2), s(sT2)))]

def mish(acc, u):
    o = []; A = o.append
    T, U, Dd, PK = vT, vT + 4, vT + 8, vT + 12
    for g in range(4):
        r = [acc + 4 * g + i for i in range(4)]
        for i in range(4): A(I("v_mul_f32 %s, %s, %s" % (v(T + i), s(sL2E), v(r[i]))))
        for i in range(4): A(I("v_min_f32 %s, 0x42200000, %s" % (v(T + i), v(T + i))))
        for i in range(4): A(I("v_exp_f32 %s, %s" % (v(T + i), v(T + i))))
        for i in range(4): A(I("v_mul_f32 %s, %s, %s" % (v(r[i]), v(vGS), v(r[i]))))
        for i in range(4): A(I("v_add_f32 %s, 2.0, %s" % (v(U + i), v(T + i))))
        for i in range(4): A(I("v_fma_f32 %s, %s, %s, 2.0" % (v(Dd + i), v(T + i), v(U + i))))
        for i in range(4): A(I("v_rcp_f32 %s, %s" % (v(Dd + i), v(Dd + i))))
        for i in range(4): A(I("v_mul_f32 %s, %s, %s" % (v(U + i), v(T + i), v(U + i))))
        for i in range(4): A(I("v_mul_f32 %s, %s, %s" % (v(r[i]), v(U + i), v(r[i]))))
        for i in range(4): A(I("v_mul_f32 %s, %s, %s" % (v(r[i]), v(Dd + i), v(r[i]))))
        for i in range(2): A(I("v_cvt_pk_bf16_f32 %s, %s, %s" % (v(PK + 2 * g + i), v(r[2 * i]), v(r[2 * i + 1]))))
        if g & 1:
            A(I("buffer_store_dwordx4 %s, %s, %s, %s offen offset:%d sc1" % (v(PK + 4 * (g >> 1), 4), v(vX0), s(sWS, 4), s(sU0 + 3 + u), 1024 * (g >> 1)), tag=("act", u)))
    return o

def bias_init(acc, u):
    return [I("v_mov_b32 %s, %s" % (v(vBQ), v(vB1 + u - 1))), I("s_nop 1"), mfma(acc, vBQ, vOQ, None)]

def mlp_common():
    o = gate() + tt_base() + enter_stage1(32)
    o += weave(kloop(1, vB, 32, init=bias_init(vB, 1)), mish(vA, 0), 0, 30) + stamp("s1")
    k2 = kloop(2, vA, 32, init=bias_init(vA, 2), last=True)
    o += weave(k2, mish(vB, 1), 0, 30) + stamp("s2")
    return o

def mlp_a():
    o = [I("s_and_b32 %s, %s, 1" % (s(sT0), s(sC))), I("s_lshl_b32 %s, %s, 6" % (s(sT0), s(sT0))),
         I("v_xor_b32 %s, %s, %s" % (v(vAW), s(sT0), v(vAW))), I("v_xor_b32 %s, %s, %s" % (v(vAW2), s(sT0), v(vAW2)))]
    for g in range(96, 99): o += wread(g // 4, g % 4)
    o += weave(kloop(3, vB, 32, init=bias_init(vB, 3), last=True), mish(vA, 2), 0, 30) + stamp("s3")
    o += mish(vB, 3)
    return o

def mlp_b():
    return weave(kloop(3, vB, 32, last=True, do_mfma=False), mish(vA, 2), 0, 8) + stamp("s3")

def mlp_pub():
    return [Wait(vm=0), I("s_barrier")] + signal("L_mpub", flag_off(0)) + stamp("pub2")

P0, P1, KB, SC = vT, vT + 16, vT + 32, vT + 40
vPERM = 16

def att_setup():
    o = []; A = o.append
    a0, a1, a2 = SC, SC + 1, SC + 2
    A(I("v_lshrrev_b32 %s, 5, v0" % v(a0))); A(I("v_bfe_u32 %s, v0, 2, 2" % v(a1)))
    A(I("v_lshl_add_u32 %s, %s, 2, %s" % (v(a1), v(a0), v(a1)))); A(I("v_lshlrev_b32 %s, 5, %s" % (v(a1), v(a1))))
    A(I("v_bfe_u32 %s, v0, 4, 1" % v(a2))); A(I("v_lshl_add_u32 %s, %s, 4, %s" % (v(a1), v(a2), v(a1))))
    A(I("v_bfe_u32 %s, v0, 1, 1" % v(a2))); A(I("v_lshl_add_u32 %s, %s, 3, %s" % (v(a1), v(a2), v(a1))))
    A(I("s_lshl_b32 %s, %s, 10" % (s(sT0), s(sSET)))); A(I("s_add_u32 %s, %s, 0x%x" % (s(sT0), s(sT0), SIDE)))
    A(I("v_add_u32 %s, %s, %s" % (v(a1), s(sT0), v(a1))))
    for a in range(2):
        for u in range(2):
            A(I("ds_read_b64_tr_b16 %s, %s offset:%d" % (v(vPHI + 4 * a + 2 * u, 2), v(a1), a * 512 + u * 256), tag="phi"))
    A(I("v_and_b32 %s, 31, v0" % v(a1))); A(I("v_lshlrev_b32 %s, 2, %s" % (v(a0), v(a0))))
    A(I("v_sub_u32 %s, %s, %s" % (v(a1), v(a1), v(a0))))
    A(I("v_and_b32 %s, 1, %s" % (v(a0), v(a1)))); A(I("v_lshlrev_b32 %s, 4, %s" % (v(a0), v(a0))))
    A(I("s_movk_i32 %s, 0x3f80" % s(sT0))); A(I("v_lshlrev_b32 %s, %s, %s" % (v(a0), v(a0), s(sT0))))
    A(I("v_ashrrev_i32 %s, 1, %s" % (v(a1), v(a1))))
    for m in range(2):
        for q in range(4):
            tgt = ((2 * q & 3) + 8 * (q >> 1) + 16 * m) // 2
            A(I("v_cmp_eq_u32 vcc, %d, %s" % (tgt, v(a1)), glue=True)); A(I("s_nop 1", glue=True))
            A(I("v_cndmask_b32 %s, 0, %s, vcc" % (v(vPERM + 4 * m + q), v(a0))))
    A(I("v_bfe_u32 %s, v0, 2, 1" % v(a0))); A(I("v_lshlrev_b32 %s, 31, %s" % (v(a0), v(a0))))
    A(I("v_lshrrev_b32 %s, 16, %s" % (v(a1), v(a0)))); A(I("v_or_b32 %s, %s, %s" % (v(a0), v(a0), v(a1))))
    A(Wait(lg="phi", glue=True))
    for q in range(8): A(I("v_xor_b32 %s, %s, %s" % (v(vPHI + q), v(a0), v(vPHI + q))))
    return o

def softmax(P, out):
    o = []; A = o.append
    m, sm = SC + 4, SC + 5
    A(I("v_max3_f32 %s, %s, %s, %s" % (v(m), v(P), v(P + 1), v(P + 2))))
    for i in range(3, 15, 2): A(I("v_max3_f32 %s, %s, %s, %s" % (v(m), v(m), v(P + i), v(P + i + 1))))
    A(I("v_max_f32 %s, %s, %s" % (v(m), v(m), v(P + 15))))
    A(I("v_mul_f32 %s, %s, %s" % (v(m), s(sL2E), v(m))))
    for i in range(16): A(I("v_fma_f32 %s, %s, %s, -%s" % (v(P + i), v(P + i), s(sL2E), v(m))))
    for i in range(16): A(I("v_exp_f32 %s, %s" % (v(P + i), v(P + i))))
    A(I("v_add_f32 %s, %s, %s" % (v(sm), v(P), v(P + 1)))); A(I("v_add_f32 %s, %s, %s" % (v(m), v(P + 2), v(P + 3))))
    for i in range(4, 16, 2):
        A(I("v_add_f32 %s, %s, %s" % (v(sm), v(sm), v(P + i)))); A(I("v_add_f32 %s, %s, %s" % (v(m), v(m), v(P + i + 1))))
    A(I("v_add_f32 %s, %s, %s" % (v(sm), v(sm), v(m)))); A(I("v_rcp_f32 %s, %s" % (v(sm), v(sm)))); A(I("s_nop 0"))
    for i in range(16): A(I("v_mul_f32 %s, %s, %s" % (v(P + i), v(sm), v(P + i))))
    cv = [I("v_cvt_pk_bf16_f32 %s, %s, %s" % (v(out + q), v(P + 2 * q), v(P + 2 * q + 1))) for q in range(8)]
    return o, cv

def feat(acc):
    o = [I("v_cvt_pk_bf16_f32 %s, %s, %s" % (v(KB + q), v(acc + 2 * q), v(acc + 2 * q + 1))) for q in range(8)]
    o += [I("s_nop 0"), mfma(P0, vPHI, KB, None), mfma(P1, vPHI + 4, KB + 4, None)]
    return o

def cvt8(dst, src):
    return [I("v_cvt_pk_bf16_f32 %s, %s, %s" % (v(dst + q), v(src + 2 * q), v(src + 2 * q + 1))) for q in range(8)]

def k_epi():
    s0, c0 = softmax(P0, KB); s1, c1 = softmax(P1, KB)
    tr = [I("s_nop 0"), mfma(vA, KB, vPERM, None), mfma(vA, KB + 4, vPERM + 4, vA)]
    tr2 = [I("s_nop 0"), mfma(vA, KB, vPERM, None), mfma(vA, KB + 4, vPERM + 4, vA)]
    return feat(vA), s0 + c0 + tr + s1 + cvt8(P0, vA) + c1 + tr2, cvt8(P0 + 8, vA)

def v_part():
    o = []; A = o.append
    msk = SC; ad = SC + 1
    o += cvt8(KB, vB)
    A(I("v_bfe_i32 %s, v0, 4, 1" % v(msk)))
    A(I("s_mov_b32 %s, 0x3f803f80" % s(sT0)))
    for q in range(8): A(I("v_bfi_b32 %s, %s, %s, %s" % (v(P1 + q), v(msk), s(sT0), v(KB + q))))
    A(I("s_nop 0"))
    A(mfma(vB, P0, P1, None)); A(mfma(vB, P0 + 4, P1 + 4, vB))
    for q in range(8): A(I("v_bfi_b32 %s, %s, %s, %s" % (v(P1 + 8 + q), v(msk), v(KB + q), s(sT0))))
    A(I("s_lshl_b32 %s, %s, 15" % (s(sT1), s(sSET)))); A(I("s_lshl_b32 %s, %s, 12" % (s(sT2), s(sTG))))
    A(I("s_add_u32 %s, %s, %s" % (s(sT1), s(sT1), s(sT2)))); A(I("s_add_u32 %s, %s, 0x%x" % (s(sT1), s(sT1), XB)))
    A(I("v_add_u32 %s, %s, %s" % (v(ad), s(sT1), v(vL16))))
    for q in range(4): A(I("ds_write_b128 %s, %s offset:%d" % (v(ad), v(vB + 4 * q, 4), q * 1024), tag="kvw"))
    A(mfma(vB, P0 + 8, P1 + 8, None)); A(mfma(vB, P0 + 12, P1 + 12, vB))
    A(I("v_bfe_u32 %s, v0, 4, 1" % v(SC + 2))); A(I("s_bfe_u32 %s, %s, 0x10001" % (s(sT1), s(sW_))))
    A(I("v_cmp_eq_u32 %s, %s, %s" % (s(100, 2) if not CFG["diag"] else "s[60:61]", s(sT1), v(SC + 2))))
    A(I("v_lshrrev_b32 %s, 5, v0" % v(SC + 2))); A(I("v_and_b32 %s, 15, v0" % v(SC + 3)))
    A(I("v_lshl_add_u32 %s, %s, 4, %s" % (v(vAX), v(SC + 2), v(SC + 3)))); A(I("v_lshlrev_b32 %s, 4, %s" % (v(vAX), v(vAX))))
    A(I("s_lshl_b32 %s, %s, 9" % (s(sT1), s(sW_)))); A(I("v_add_u32 %s, %s, %s" % (v(vAX), s(sT1), v(vAX))))
    A(I("s_lshl_b32 %s, %s, 5" % (s(sT1), s(sW_)))); A(I("s_add_u32 %s, %s, 0x1000" % (s(sT1), s(sT1))))
    A(I("v_lshl_add_u32 %s, %s, 4, %s" % (v(SC + 2), v(SC + 2), s(sT1))))
    mk = s(100, 2) if not CFG["diag"] else "s[60:61]"
    A(I("v_cndmask_b32 %s, %s, %s, %s" % (v(vAX), v(SC + 2), v(vAX), mk)))
    A(I("v_cmp_eq_u32 vcc, 0, %s" % v(SC + 3))); A(I("s_or_b64 vcc, vcc, %s" % mk))
    A(I("v_mov_b32 %s, 0x%x" % (v(SC + 2), WSN)))
    A(I("v_cndmask_b32 %s, %s, %s, vcc" % (v(vAX + 1), v(SC + 2), v(vAX))))
    for q in range(4): A(I("ds_write_b128 %s, %s offset:%d" % (v(ad), v(vB + 4 * q, 4), 16384 + q * 1024), tag="kvw"))
    A(Wait(lg="kvw"))
    return o

def kv_reduce():
    o = []; A = o.append
    ad = SC + 1
    A(I("s_lshr_b32 %s, %s, 1" % (s(sT1), s(sW_)))); A(I("s_lshl_b32 %s, %s, 14" % (s(sT1), s(sT1))))
    A(I("s_and_b32 %s, %s, 1" % (s(sT2), s(sW_)))); A(I("s_lshl_b32 %s, %s, 11" % (s(sT2), s(sT2))))
    A(I("s_add_u32 %s, %s, %s" % (s(sT1), s(sT1), s(sT2)))); A(I("s_add_u32 %s, %s, 0x%x" % (s(sT1), s(sT1), XB)))
    A(I("v_add_u32 %s, %s, %s" % (v(ad), s(sT1), v(vL16))))
    for tg in range(4):
        for qq in range(2):
            A(I("ds_read_b128 %s, %s offset:%d" % (v(P0 + 8 * tg + 4 * qq, 4), v(ad), tg * 4096 + qq * 1024), tag=("kvr", tg)))
    A(I("s_lshl4_add_u32 %s, %s, %s" % (s(sT1), s(sC), s(sR)))); A(I("s_mul_i32 %s, %s, %d" % (s(sT1), s(sT1), KVS)))
    A(I("s_add_u32 %s, %s, 0x%x" % (s(sT1), s(sT1), KVP)))
    A(Wait(lg=[("kvr", 1)], glue=True))
    for q in range(8): A(I("v_add_f32 %s, %s, %s" % (v(P0 + q), v(P0 + q), v(P0 + 8 + q))))
    A(Wait(lg=[("kvr", 3)], glue=True))
    for q in range(8): A(I("v_add_f32 %s, %s, %s" % (v(P0 + 16 + q), v(P0 + 16 + q), v(P0 + 24 + q))))
    for q in range(8): A(I("v_add_f32 %s, %s, %s" % (v(P0 + q), v(P0 + q), v(P0 + 16 + q))))
    for q in range(4): A(I("v_cvt_pk_bf16_f32 %s, %s, %s" % (v(P0 + 8 + q), v(P0 + 2 * q), v(P0 + 2 * q + 1))))
    A(I("buffer_store_dwordx4 %s, %s, %s, %s offen sc1" % (v(P0 + 8, 4), v(vAX + 1), s(sWS, 4), s(sT1)), tag="kvst"))
    return o

def poll(lbl, nd, off_sreg, cond, cnt_reg):
    d = vT + 44
    ld = "buffer_load_dword%s %s, off, %s, %s sc1" % ("x2" if nd == 2 else "", v(d, nd), s(sWS, 4), s(off_sreg))
    o = [I("s_mov_b32 %s, 0x8000" % s(cnt_reg)), I("%s_spin:" % lbl), I(ld, tag="RAW"), I("s_waitcnt vmcnt(0)")]
    o += cond(d)
    o += [I("s_cbranch_scc1 %s_done" % lbl), I("s_sub_u32 %s, %s, 1" % (s(cnt_reg), s(cnt_reg))),
          I("s_cbranch_scc0 %s_spin" % lbl), I("%s_done:" % lbl), Wait(vm=0)]
    return o

def att_path():
    PQ = vXF + 96
    o = gate() + tt_base() + enter_stage1(24)
    f, mid, tail = k_epi()
    k1 = kloop(1, vB, 24, swap=True)
    k1 = weave(k1, att_setup() + f + [I("s_nop 0")] + mid, 0, 28)
    k1 = weave(k1, tail, 31, 31)
    o += k1 + stamp("s1")
    k2 = kloop(2, vA, 24, last=True)
    k2 = weave(k2, v_part(), 1, 12)
    k2 = weave(k2, kv_reduce(), 14, 22)
    o += k2 + stamp("s2")
    s0, c0 = softmax(P0, PQ); s1, c1 = softmax(P1, PQ + 8)
    o += feat(vA) + s0 + c0
    o += [Wait(vm="kvst"), I("s_barrier")]
    o += signal("L_kpub", [I("s_lshl_b32 %s, %s, 10" % (s(sT2), s(sC))), I("s_add_u32 %s, %s, 32" % (s(sT2), s(sT2)))])
    o += stamp("pub1")
    o += s1 + c1
    o += [I("s_cmp_lg_u32 %s, 0" % s(sW_)), I("s_cbranch_scc1 L_kv_skip")]
    o += poll("L_kv", 1, sT2, lambda d: [I("v_readfirstlane_b32 %s, %s" % (s(sT0), v(d))), I("s_cmp_ge_u32 %s, 16" % s(sT0))], sT1)
    o += [I("L_kv_skip:"), I("s_barrier")] + stamp("kvseen")
    o += [I("s_mul_i32 %s, %s, %d" % (s(sT1), s(sC), 16 * KVS)), I("s_add_u32 %s, %s, 0x%x" % (s(sT1), s(sT1), KVP))]
    for r in range(16):
        o.append(I("buffer_load_dwordx4 %s, %s, %s, %s offen sc1" % (v(vXF + 4 * r, 4), v(vAX), s(sWS, 4), s(sT1)), tag=("g", r)))
        if r < 15: o.append(I("s_add_u32 %s, %s, %d" % (s(sT1), s(sT1), KVS)))
    for r in range(16):
        o += [Wait(vm=[("g", r)]), mfma(vA, vPERM, vXF + 4 * r, vA if r else None)]
    o += [I("s_lshl_b32 %s, %s, 10" % (s(sT1), s(sW_))), I("v_add_u32 %s, %s, %s" % (v(SC), s(sT1), v(vL16))),
          I("s_lshl_b32 %s, %s, 12" % (s(sT1), s(sSET))), I("v_add_u32 %s, %s, %s" % (v(SC + 1), s(sT1), v(vL16)))]
    o += [I("v_cvt_pk_bf16_f32 %s, %s, %s" % (v(KB + q), v(vA + 2 * q), v(vA + 2 * q + 1))) for q in range(4)]
    o += [I("ds_write_b128 %s, %s offset:%d" % (v(SC), v(KB, 4), KVL), tag="kvl"), Wait(lg=0), I("s_barrier")]
    o += stamp("gath")
    for q in range(4): o.append(I("ds_read_b128 %s, %s offset:%d" % (v(P0 + 4 * q, 4), v(SC + 1), KVL + q * 1024), tag=("kvf", q)))
    o += [I("s_lshl1_add_u32 %s, %s, %s" % (s(sT1), s(sC), s(sSET))), I("s_lshl_b32 %s, %s, 11" % (s(sT1), s(sT1))),
          I("s_add_u32 %s, %s, 0x%x" % (s(sT1), s(sT1), A2 + 112 * 1024))]
    for a, acc in ((0, vA), (1, vB)):
        o += [Wait(lg=[("kvf", 2 * a + 1)]), mfma(acc, P0 + 8 * a, PQ + 8 * a, None), mfma(acc, P0 + 8 * a + 4, PQ + 8 * a + 4, acc)]
    for a, acc in ((0, vA), (1, vB)):
        den = acc + (8 if a == 0 else 0); num = acc + (0 if a == 0 else 8)
        o += [I("v_add_f32 %s, 0x358637bd, %s" % (v(SC + 2), v(den))), I("v_rcp_f32 %s, %s" % (v(SC + 2), v(SC + 2))), I("s_nop 0"),
              I("v_mul_f32 %s, %s, %s" % (v(SC + 2), v(vGS), v(SC + 2)))]
        o += [I("v_mul_f32 %s, %s, %s" % (v(num + q), v(SC + 2), v(num + q))) for q in range(8)]
        o += [I("v_cvt_pk_bf16_f32 %s, %s, %s" % (v(KB + 4 * a + q), v(num + 2 * q), v(num + 2 * q + 1))) for q in range(4)]
        o.append(I("buffer_store_dwordx4 %s, %s, %s, %s offen offset:%d sc1" % (v(KB + 4 * a, 4), v(vX0), s(sWS, 4), s(sT1), 1024 * a), tag="ost"))
    o += [Wait(vm=0), I("s_barrier")] + signal("L_opub", flag_off(2), init=False) + stamp("pub2")
    return o

def phase2():
    DA = CFG["DA"]; NW = 20
    o = []; A = o.append
    ACC = 128; AF = 32 if DA * 8 <= 40 else 192; WFR = 80
    vD0, vD1, vR0, vR1, vA0, vA1 = 1, 3, 4, 5, 6, 7
    sM, sKA, sKB, sFL, sLO, sHI = 62, 63, 64, 65, 66, 67
    A(I("s_cmp_eq_u32 %s, 0" % s(sSET))); A(I("s_cbranch_scc1 L_reduce"))
    o += srd(sW2, pW2, 1792 * 1024) + srd(sWO, pWO, 512 * 1024)
    a0, a1 = vT, vT + 1
    A(I("v_lshrrev_b32 %s, 3, v0" % v(a0))); A(I("v_bfe_u32 %s, v0, 4, 1" % v(a1))); A(I("v_lshlrev_b32 %s, 2, %s" % (v(a1), v(a1))))
    A(I("v_and_b32 %s, 7, v0" % v(vD0))); A(I("v_xor_b32 %s, %s, %s" % (v(vD0), v(vD0), v(a1))))
    A(I("v_lshlrev_b32 %s, 4, %s" % (v(vD0), v(vD0)))); A(I("v_lshl_add_u32 %s, %s, 10, %s" % (v(vD0), v(a0), v(vD0))))
    A(I("s_lshl_b32 %s, %s, 7" % (s(sT0), s(sCT)))); A(I("v_add_u32 %s, %s, %s" % (v(vD0), s(sT0), v(vD0))))
    A(I("v_add_u32 %s, 0x1c00, %s" % (v(vD1), v(vD0))))
    A(I("s_mul_i32 %s, %s, 0xa000" % (s(sM), s(sTG))))
    A(I("s_mul_i32 %s, %s, 28" % (s(sLO), s(sTG)))); A(I("s_add_u32 %s, %s, 28" % (s(sHI), s(sLO))))
    if CFG["rot2"]:
        A(I("s_and_b32 %s, %s, 3" % (s(sT0), s(sRT)))); A(I("s_lshl1_add_u32 %s, %s, %s" % (s(sT0), s(sT0), s(sCT))))
        A(I("s_mul_i32 %s, %s, 7" % (s(sT0), s(sT0)))); A(I("s_lshr_b32 %s, %s, 1" % (s(sT0), s(sT0))))
        A(I("s_cmp_ge_u32 %s, 28" % s(sT0))); A(I("s_cselect_b32 %s, 28, 0" % s(sT1))); A(I("s_sub_u32 %s, %s, %s" % (s(sT0), s(sT0), s(sT1))))
        A(I("s_add_u32 %s, %s, %s" % (s(sKB), s(sLO), s(sT0))))
    else: A(I("s_mov_b32 %s, %s" % (s(sKB), s(sLO))))
    A(I("s_mov_b32 %s, %s" % (s(sKA), s(sKB))))
    def adv(reg):
        return [I("s_add_u32 %s, %s, 1" % (s(reg), s(reg))), I("s_cmp_eq_u32 %s, %s" % (s(reg), s(sHI))), I("s_cmov_b32 %s, %s" % (s(reg), s(sLO)))]
    def wdma(i):
        r = []
        if i < 28: r.append(I("s_lshl_b32 %s, %s, 14" % (s(sT0), s(sKB)))); srdn = sW2
        else:
            r += [I("s_lshl3_add_u32 %s, %s, %d" % (s(sT0), s(sTG), i - 28)), I("s_lshl_b32 %s, %s, 14" % (s(sT0), s(sT0)))]; srdn = sWO
        r += [I("s_add_u32 m0, %s, 0x%x" % (s(sM), (i % NW) * 2048))]
        if i < 27: r += adv(sKB)
        else: r.append(I("s_nop 0"))
        r += [I("buffer_load_dwordx4 %s, %s, %s offen lds" % (v(vD0), s(srdn, 4), s(sT0)), tag=("W", i)),
              I("buffer_load_dwordx4 %s, %s, %s offen offset:1024 lds" % (v(vD1), s(srdn, 4), s(sT0)), tag=("W", i))]
        return r
    def aload(i):
        r = []
        if i < 28: r.append(I("s_lshl_b32 %s, %s, 10" % (s(sT1), s(sKA))))
        else: r += [I("s_lshl3_add_u32 %s, %s, %d" % (s(sT1), s(sTG), i - 28)), I("s_add_u32 %s, %s, 112" % (s(sT1), s(sT1))), I("s_lshl_b32 %s, %s, 10" % (s(sT1), s(sT1)))]
        if i < 27: r += adv(sKA)
        f = AF + 8 * (i % DA)
        r += [I("buffer_load_dwordx4 %s, %s, %s, %s offen sc1" % (v(f, 4), v(vA0), s(sWS, 4), s(sT1)), tag=("A", i)),
              I("buffer_load_dwordx4 %s, %s, %s, %s offen sc1" % (v(f + 4, 4), v(vA1), s(sWS, 4), s(sT1)), tag=("A", i))]
        return r
    def wrd(i):
        f = WFR + 8 * (i & 1)
        return [I("ds_read_b64_tr_b16 %s, %s offset:%d" % (v(f + 4 * t + 2 * u, 2), v(vR0 + t), (i % NW) * 2048 + u * 1024), tag=("F", i, t)) for t in range(2) for u in range(2)]
    for i in range(NW - 1): o += wdma(i)
    o += stamp("p2pf")
    A(I("v_lshrrev_b32 %s, 5, v0" % v(a0))); A(I("v_bfe_u32 %s, v0, 2, 2" % v(a1)))
    A(I("v_lshl_add_u32 %s, %s, 2, %s" % (v(a0), v(a0), v(a1)))); A(I("v_lshlrev_b32 %s, 7, %s" % (v(vR0), v(a0))))
    A(I("v_lshrrev_b32 %s, 1, %s" % (v(a1), v(a1)))); A(I("v_lshl_add_u32 %s, %s, 6, %s" % (v(vR0), v(a1), v(vR0))))
    A(I("v_bfe_u32 %s, v0, 4, 1" % v(a1))); A(I("v_lshl_add_u32 %s, %s, 5, %s" % (v(vR0), v(a1), v(vR0))))
    A(I("v_and_b32 %s, 3, v0" % v(a1))); A(I("v_lshl_add_u32 %s, %s, 3, %s" % (v(vR0), v(a1), v(vR0))))
    A(I("v_add_u32 %s, %s, %s" % (v(vR0), s(sM), v(vR0)))); A(I("v_xor_b32 %s, 64, %s" % (v(vR1), v(vR0))))
    A(I("s_mul_i32 %s, %s, 0x%x" % (s(sT0), s(sRT), 2 * TTS))); A(I("s_add_u32 %s, %s, 0x%x" % (s(sT0), s(sT0), A2)))
    A(I("v_add_u32 %s, %s, %s" % (v(vA0), s(sT0), v(vL16)))); A(I("v_add_u32 %s, 0x%x, %s" % (v(vA1), TTS, v(vA0))))
    A(I("s_lshr_b32 %s, %s, 1" % (s(sFL), s(sRT)))); A(I("s_lshl2_add_u32 %s, %s, %s" % (s(sFL), s(sFL), s(sTG)))); A(I("s_lshl_b32 %s, %s, 7" % (s(sFL), s(sFL))))
    o += check_init("L_p2i")
    both = lambda d: [I("v_min_u32 %s, %s, %s" % (v(d), v(d), v(d + 1))), I("s_nop 0"), I("v_readfirstlane_b32 %s, %s" % (s(sT0), v(d))), I("s_cmp_ge_u32 %s, 1" % s(sT0))]
    o += poll("L_act", 2, sFL, both, sT1) + stamp("actseen")
    for i in range(DA - 1): o += aload(i)
    o += wrd(0)
    for i in range(36):
        if i + DA - 1 == 28:
            A(I("s_add_u32 %s, %s, 8" % (s(sFL), s(sFL))))
            o += poll("L_o", 2, sFL, both, sT1) + stamp("oseen")
        if i + DA - 1 < 36: o += aload(i + DA - 1)
        if i + NW - 1 < 36: o += wdma(i + NW - 1)
        if i + 1 < 36:
            A(Wait(vm=[("W", i + 1)])); o += wrd(i + 1)
        A(Wait(vm=[("A", i)]))
        f = AF + 8 * (i % DA); wf = WFR + 8 * (i & 1)
        for t in range(2):
            A(Wait(lg=[("F", i, t)]))
            for th in range(2):
                acc = ACC + 16 * (2 * t + th)
                A(mfma(acc, wf + 4 * t, f + 4 * th, acc if i else None))
    o += stamp("p2end")
    A(I("s_barrier"))
    A(I("v_and_b32 %s, 31, v0" % v(a0))); A(I("v_mul_u32_u24 %s, %d, %s" % (v(a0), RS, v(a0))))
    A(I("v_lshrrev_b32 %s, 5, v0" % v(a1))); A(I("v_lshl_add_u32 %s, %s, 4, %s" % (v(a0), v(a1), v(a0))))
    A(I("s_mul_i32 %s, %s, %d" % (s(sT0), s(sTG), PS))); A(I("v_add_u32 %s, %s, %s" % (v(a0), s(sT0), v(a0))))
    for t in range(2):
        for th in range(2):
            for q in range(4):
                A(I("ds_write_b128 %s, %s offset:%d" % (v(a0), v(ACC + 16 * (2 * t + th) + 4 * q, 4), th * 32 * RS + t * 128 + q * 32), tag="red"))
    A(Wait(lg=0)); A(I("s_branch L_final"))
    tail = [I("L_reduce:"), I("s_barrier"), I("L_final:"), I("s_barrier")]
    B = tail.append
    B(I("v_lshrrev_b32 %s, 3, v0" % v(a0))); B(I("s_lshl_b32 %s, %s, 3" % (s(sT0), s(sW_)))); B(I("v_add_u32 %s, %s, %s" % (v(a0), s(sT0), v(a0))))
    B(I("v_and_b32 %s, 7, v0" % v(a1)))
    B(I("v_mul_u32_u24 %s, %d, %s" % (v(vT + 2), RS, v(a0)))); B(I("v_lshl_add_u32 %s, %s, 5, %s" % (v(vT + 2), v(a1), v(vT + 2))))
    for p in range(4):
        for q in range(2):
            B(I("ds_read_b128 %s, %s offset:%d" % (v(ACC + 8 * p + 4 * q, 4), v(vT + 2), p * PS + q * 16), tag=("r", p)))
    tail += srd(sOUT, pOUT, 2048 * 1024)
    B(I("v_lshlrev_b32 %s, 10, %s" % (v(a0), v(a0)))); B(I("v_lshl_add_u32 %s, %s, 4, %s" % (v(a0), v(a1), v(a0))))
    B(I("s_lshl_b32 %s, %s, 16" % (s(sT0), s(sRT)))); B(I("s_lshl_b32 %s, %s, 7" % (s(sT1), s(sCT)))); B(I("s_add_u32 %s, %s, %s" % (s(sT0), s(sT0), s(sT1))))
    B(Wait(lg=[("r", 1)]))
    for q in range(8): B(I("v_add_f32 %s, %s, %s" % (v(ACC + q), v(ACC + q), v(ACC + 8 + q))))
    B(Wait(lg=[("r", 3)]))
    for q in range(8): B(I("v_add_f32 %s, %s, %s" % (v(ACC + 16 + q), v(ACC + 16 + q), v(ACC + 24 + q))))
    for q in range(8): B(I("v_add_f32 %s, %s, %s" % (v(ACC + q), v(ACC + q), v(ACC + 16 + q))))
    for q in range(4): B(I("v_cvt_pk_bf16_f32 %s, %s, %s" % (v(ACC + 8 + q), v(ACC + 2 * q), v(ACC + 2 * q + 1))))
    B(I("buffer_store_dwordx4 %s, %s, %s, %s offen" % (v(ACC + 8, 4), v(a0), s(sOUT, 4), s(sT0)), tag="out"))
    if CFG["diag"]:
        B(Wait(vm=0)); tail += stamp("end")
        B(I("s_lshl3_add_u32 %s, s2, %s" % (s(sT0), s(sW_)))); B(I("s_lshl_b32 %s, %s, 8" % (s(sT0), s(sT0))))
        B(I("s_add_u32 %s, %s, 0x%x" % (s(sT0), s(sT0), STAMP))); B(I("v_lshlrev_b32 %s, 2, v0" % v(a0)))
        B(I("buffer_store_dword %s, %s, %s, %s offen" % (v(vSTAMP), v(a0), s(sWS, 4), s(sT0)), tag="st"))
    B(I("L_end:")); B(I("s_endpgm"))
    return o, tail

def build(npf):
    rep = []
    def fin(seq, vm, lg, hist):
        r, vm2, lg2 = resolve_waits(seq, vm, lg)
        r = pad_hazards(r, hist, rep)
        return r, vm2, lg2
    head, vm, lg = fin(prologue(npf) + stage0() + [I("s_cmp_lg_u32 %s, 0" % s(sTYPE)), I("s_cbranch_scc1 L_mlp")], [], [], [])
    att, vma, lga = fin(att_path() + [I("s_branch L_p2")], vm, lg, head)
    mc, vmm, lgm = fin([I("L_mlp:")] + mlp_common() + [I("s_cmp_lg_u32 %s, 0" % s(sSET)), I("s_cbranch_scc1 L_mlpb")], vm, lg, head)
    ma, vm1, lg1 = fin(mlp_a() + [Wait(vm=0, lg=0), I("s_branch L_mpub")], vmm, lgm, mc)
    mb, vm2, lg2 = fin([I("L_mlpb:")] + mlp_b() + [Wait(vm=0, lg=0)], vmm, lgm, mc)
    mp, vm3, lg3 = fin([I("L_mpub:")] + mlp_pub(), [], [], mb)
    assert not vma and not vm3, (vma, vm3)
    p2, tail = phase2()
    p2r, _, _ = fin([I("L_p2:")] + p2, ["initdummy"], [], mp)
    tl, _, _ = fin(tail, [], [], p2r)
    return head + att + mc + ma + mb + mp + p2r + tl, rep

HEADER = open("cdna_kernels/%s.s.ref" % NAME).read().split("; Override launch")[0]
def emit(path):
    npf = 3
    prog, rep = build(npf)
    txt = HEADER + "; @launch grid=(256,1,1) block=(512,1,1) lds=163840\n"
    txt += "; Generated by a Python script of my own (fused two-phase persistent kernel); see comments in the body.\n"
    txt += '.amdgcn_target "amdgcn-amd-amdhsa--gfx950"\n.text\n.globl %s_kernel\n.p2align 8\n.type %s_kernel,@function\n%s_kernel:\n' % (NAME, NAME, NAME)
    for i in prog:
        txt += (i.text if i.kind == "label" else "    " + i.text) + "\n"
    txt += "L_pad:\n.fill ((%d + 256 - (L_pad - %s_kernel)) / 4) * (((L_pad - %s_kernel) - (%d + 256)) >> 63 & 1), 4, 0xbf800000\n" % (npf * 8192, NAME, NAME, npf * 8192)
    txt += """.section .rodata,"a"
.p2align 6
.amdhsa_kernel %s_kernel
  .amdhsa_next_free_vgpr 256
  .amdhsa_next_free_sgpr 102
  .amdhsa_accum_offset 256
  .amdhsa_group_segment_fixed_size 0
  .amdhsa_kernarg_size 96
  .amdhsa_user_sgpr_count 2
  .amdhsa_user_sgpr_kernarg_segment_ptr 1
  .amdhsa_system_sgpr_workgroup_id_x 1
  .amdhsa_float_denorm_mode_32 3
.end_amdhsa_kernel
""" % NAME
    open(path, "w").write(txt)
    print("instructions:", len(prog), " padded hazards:", len(rep), "states", sum(n for n, _ in rep))
    if CFG.get("verbose"):
        for n, t in rep: print("  pad", n, t)

if __name__ == "__main__":
    emit(sys.argv[1])
```
